```python
import torch

def _softmax(x, axis=-1):
    return torch.softmax(x, dim=axis)
def _gelu(x):
    return torch.nn.functional.gelu(x, approximate="tanh")
def _silu(x):
    return torch.nn.functional.silu(x)
def _sigmoid(x):
    return torch.sigmoid(x)
def _layernorm(x, axis=-1, eps=1e-5):
    m = x.mean(dim=axis, keepdim=True)
    v = x.var(dim=axis, keepdim=True, unbiased=False)
    return (x - m) / torch.sqrt(v + eps)
def _scatter_add(tgt, idx, src, axis=0):
    return tgt.clone().index_add_(axis, idx, src)
def _segment_sum(src, seg, n):
    out = torch.zeros((n,) + src.shape[1:], dtype=src.dtype)
    return out.index_add_(0, seg, src)
def _pad(x, pw):
    flat = tuple(v for pair in reversed(pw) for v in pair)
    return torch.nn.functional.pad(x, flat)

kernel_name = 'recurrent_scan__ssm_conv_s4d__geglu_ffn__prompt'

def setup_inputs():

    _w = (lambda a: (lambda t: t.to(torch.bfloat16) if t.is_floating_point() else t)(torch.as_tensor(a)))
    def _A_setup():
        Bsz, L, D, N = 1, 2048, 576, 128
        return {
            "u": _w((lambda *s: torch.randn(*s, dtype=torch.bfloat16) * 0.05)(Bsz, L, D)),
            "log_A_real": _w((lambda *s: torch.randn(*s, dtype=torch.bfloat16) * 6.4)(D, N) * 0.5),
            "A_imag": _w((lambda *s: torch.randn(*s, dtype=torch.bfloat16) * 0.05)(D, N) * 3.14),
            "C_real": _w((lambda *s: torch.randn(*s, dtype=torch.bfloat16) * 0.05)(D, N) / N ** 0.5),
            "C_imag": _w((lambda *s: torch.randn(*s, dtype=torch.bfloat16) * 0.05)(D, N) / N ** 0.5),
            "log_dt": _w((lambda *s: torch.randn(*s, dtype=torch.bfloat16) * 0.05)(D) * 0.5 - 4.0),
            "D_skip": _w((lambda *s: torch.randn(*s, dtype=torch.bfloat16) * 0.05)(D)),
        }
    _A_in = _A_setup()

    def _B_setup():
        B, S, D, F = 1, 2048, 576, 4608
        return {
            "x": _w((lambda *s: torch.randn(*s, dtype=torch.bfloat16) * 0.05)(B, S, D)),
            "w_gate": _w((lambda *s: torch.randn(*s, dtype=torch.bfloat16) * 0.05)(D, F)),
            "w_up": _w((lambda *s: torch.randn(*s, dtype=torch.bfloat16) * 0.05)(D, F)),
            "w_down": _w((lambda *s: torch.randn(*s, dtype=torch.bfloat16) * 0.05)(F, D)),
        }
    _B_in = _B_setup()

    return {
        "A_u": _A_in["u"],
        "A_log_A_real": _A_in["log_A_real"],
        "A_A_imag": _A_in["A_imag"],
        "A_C_real": _A_in["C_real"],
        "A_C_imag": _A_in["C_imag"],
        "A_log_dt": _A_in["log_dt"],
        "A_D_skip": _A_in["D_skip"],
        "B_x": _B_in["x"],
        "B_w_gate": _B_in["w_gate"],
        "B_w_up": _B_in["w_up"],
        "B_w_down": _B_in["w_down"],
    }

def reference(A_u, A_log_A_real, A_A_imag, A_C_real, A_C_imag, A_log_dt, A_D_skip, B_x, B_w_gate, B_w_up, B_w_down):
    def _A_ref(u, log_A_real, A_imag, C_real, C_imag, log_dt, D_skip):
        L = u.shape[1]
        dt = torch.exp(log_dt)
        A = -torch.exp(log_A_real) + 1j * A_imag
        C = (C_real + 1j * C_imag) * dt[:, None]
        pos = (lambda x, dt: x.to(dt))(torch.arange(L), log_dt.dtype)
        P = torch.exp((A * dt[:, None])[:, :, None] * pos[None, None, :])
        K = 2.0 * torch.einsum("dn,dnl->dl", C, P).real
        L2 = 2 * L
        u_t = (lambda x, *d: x.permute(*d))(u, 0, 2, 1)
        Kf = (lambda x, *a, **k: torch.fft.rfft(x.float(), *a, **k))(K, L2)
        Uf = (lambda x, *a, **k: torch.fft.rfft(x.float(), *a, **k))(u_t, L2)
        y = (lambda x, *a, **k: torch.fft.irfft(x, *a, **k).to(torch.bfloat16))(Uf * Kf[None, :, :], L2)[:, :, :L]
        y = (lambda x, *d: x.permute(*d))(y, 0, 2, 1)
        return y + u * D_skip[None, None, :]

    def _B_ref(x, w_gate, w_up, w_down):
        return (_gelu(x @ w_gate) * (x @ w_up)) @ w_down

    x = A_u
    xn = _layernorm(x, axis=-1)
    s = _A_ref(xn, A_log_A_real, A_A_imag, A_C_real, A_C_imag, A_log_dt, A_D_skip)
    g = _silu(_B_ref(xn, B_w_gate, B_w_up, B_w_down))
    return x + s * g
```

```python
import re

class Asm:
    def __init__(self):
        self.lines = []
    def __call__(self, s):
        for l in s.strip('\n').split('\n'):
            l = l.strip()
            if l: self.lines.append(l)
    def label(self, name): self.lines.append(name + ':')
    def text(self):
        out = []
        for l in self.lines:
            if l.endswith(':') or l.startswith('.') or l.startswith(';'): out.append(l)
            else: out.append('  ' + l)
        return '\n'.join(out) + '\n'

def vr(b, n=1, p='v'):
    return f'{p}{b}' if n == 1 else f'{p}[{b}:{b+n-1}]'
def ar(b, n=1): return vr(b, n, 'a')
def sr(b, n=1): return vr(b, n, 's')

_reg = re.compile(r'^-?(?:abs\()?\|?([vas])(?:(\d+)|\[(\d+):(\d+)\])\)?\|?$')
def regs_of(op):
    op = op.strip()
    if op in ('vcc', 'vcc_lo', 'vcc_hi'): return {('s', 'vcc')}
    if op in ('exec', 'exec_lo', 'exec_hi'): return {('s', 'exec')}
    if op == 'm0': return {('s', 'm0')}
    m = _reg.match(op)
    if not m: return set()
    k = m.group(1)
    if m.group(2) is not None: return {(k, int(m.group(2)))}
    return {(k, i) for i in range(int(m.group(3)), int(m.group(4)) + 1)}

TRANS = ('v_exp_f32', 'v_log_f32', 'v_rcp_f32', 'v_rsq_f32', 'v_sqrt_f32', 'v_sin_f32', 'v_cos_f32')

class Ins:
    def __init__(self, text):
        self.text = text
        t = text.split(';')[0].strip()
        parts = t.split(None, 1)
        self.op = op = parts[0]
        rest = parts[1] if len(parts) > 1 else ''
        ops, cur, depth = [], '', 0
        for ch in rest:
            if ch == '[': depth += 1
            if ch == ']': depth -= 1
            if ch == ',' and depth == 0: ops.append(cur.strip()); cur = ''
            else: cur += ch
        if cur.strip(): ops.append(cur.strip())
        mods = ''
        if ops:
            last = ops[-1].split(None, 1)
            ops[-1] = last[0]
            mods = last[1] if len(last) > 1 else ''
        self.ops, self.mods = ops, mods
        self.mfma = op.startswith('v_mfma')
        self.valu = op.startswith('v_') and not self.mfma
        self.trans = any(op.startswith(x) for x in TRANS)
        self.dot = op.startswith('v_dot')
        self.dpp = 'dpp' in op or 'quad_perm' in mods or 'row_' in mods
        self.perml = op.startswith('v_permlane')
        self.vmem = op.startswith(('buffer_', 'global_', 'flat_'))
        self.ds = op.startswith('ds_')
        self.salu = op.startswith('s_')
        self.ldsdma = self.vmem and (' lds' in ' ' + mods or '_lds_' in op)
        self.passes = 0
        if self.mfma: self.passes = 8 if '32x32' in op else 4
        R, W = set(), set()
        self.srcC = set(); self.srcAB = set(); self.stdata = set()
        ro = [regs_of(o) for o in ops]
        if self.mfma:
            W |= ro[0]; self.srcAB = ro[1] | ro[2]; self.srcC = ro[3]; R |= self.srcAB | self.srcC
        elif self.valu:
            if op.startswith('v_cmp'):
                W |= ro[0]
                for r in ro[1:]: R |= r
                if op.startswith('v_cmpx'): W.add(('s', 'exec'))
            elif op.startswith(('v_add_co', 'v_sub_co', 'v_addc_co', 'v_subb_co', 'v_subrev_co')):
                W |= ro[0] | ro[1]
                for r in ro[2:]: R |= r
            elif self.perml and 'swap' in op:
                W |= ro[0] | ro[1]; R |= ro[0] | ro[1]
            elif op == 'v_nop': pass
            else:
                W |= ro[0]
                for r in ro[1:]: R |= r
                if op.startswith(('v_fmac', 'v_dot2c', 'v_writelane', 'v_pk_fmac')) or self.dpp or 'sdwa' in op: R |= ro[0]
        elif self.vmem:
            store = 'store' in op or 'atomic' in op
            if op.startswith('buffer_wbl2') or op.startswith('buffer_inv'): pass
            elif self.ldsdma:
                for r in ro: R |= r
                R.add(('s', 'm0'))
            elif store:
                for r in ro: R |= r
                if op.startswith('buffer_'): self.stdata = ro[0]
                else: self.stdata = ro[1] if not ('atomic' in op and 'sc0' in mods) else ro[2]
                if 'atomic' in op and 'sc0' in mods: W |= ro[0]
                if not re.search(r'x3|x4', op): self.stdata = set()
            else:
                W |= ro[0]
                for r in ro[1:]: R |= r
        elif self.ds:
            if op.startswith(('ds_read', 'ds_bpermute', 'ds_permute', 'ds_swizzle')):
                W |= ro[0]
                for r in ro[1:]: R |= r
            else:
                for r in ro: R |= r
        elif self.salu:
            if op.startswith(('s_cmp', 's_waitcnt', 's_nop', 's_barrier', 's_branch', 's_cbranch', 's_endpgm', 's_sleep', 's_setprio', 's_bitcmp')):
                for r in ro: R |= r
            elif ro:
                W |= ro[0]
                for r in ro[1:]: R |= r
                if 'saveexec' in op: W.add(('s', 'exec'))
        self.R, self.W = R, W
        self.states = 1
        if op == 's_nop': self.states = int(ops[0], 0) + 1

def need_states(p, c):
    n = 0
    vW = {r for r in p.W if r[0] in 'va'}
    sW = {r for r in p.W if r[0] == 's'}
    if p.mfma:
        big = p.passes == 8
        if c.mfma:
            if vW & c.srcAB: n = max(n, 12 if big else 8)
            if vW & c.srcC and not (vW == c.srcC and c.passes == p.passes): n = max(n, 10 if big else 6)
            if vW & c.W and not (vW & c.srcC): n = max(n, 10 if big else 6)
        elif c.valu or c.vmem or c.ds:
            if vW & (c.R | c.W): n = max(n, 12 if big else 8)
        if c.valu and (p.srcC & c.W): n = max(n, 7 if big else 3)
        if (c.ds or c.vmem) and (p.srcC & c.W): n = max(n, 7 if big else 3)
    if p.valu:
        if c.mfma and vW & c.R: n = max(n, 3 if p.dot else 2)
        if p.trans and c.valu and not c.trans and vW & c.R: n = max(n, 1)
        if p.trans and (c.vmem or c.ds) and vW & c.R: n = max(n, 1)
        if c.valu and c.dpp and vW & c.R: n = max(n, 2)
        if c.perml and vW & c.R: n = max(n, 2)
        if c.op.startswith(('v_readlane', 'v_readfirstlane')) and vW & c.R: n = max(n, 1)
        if sW:
            if c.vmem and sW & c.R: n = max(n, 5)
            if c.valu and sW & c.R: n = max(n, 4 if c.op.startswith(('v_readlane', 'v_writelane')) else 2)
            if c.valu and ('s', 'vcc') in sW and c.op.startswith(('v_cndmask', 'v_addc', 'v_subb', 'v_div_fmas')): n = max(n, 2)
            if c.salu and sW & c.R: n = max(n, 1)
            if ('s', 'exec') in sW and (c.valu or c.mfma): n = max(n, 5)
        if p.dot and vW & (c.R | c.W):
            if not (c.op == p.op and c.ops[-1] == p.ops[0] and not (vW & (regs_of(c.ops[1]) | regs_of(c.ops[2])))) and not (c.op == p.op and c.op.startswith('v_dot2c') and not (vW & (regs_of(c.ops[1]) | regs_of(c.ops[2])))):
                n = max(n, 3)
        if ('sdwa' in p.op or 'op_sel' in p.mods and not p.op.startswith('v_pk')) and c.valu and vW & (c.R | c.W): n = max(n, 1)
    if p.salu and ('s', 'm0') in p.W and (c.ldsdma or c.op.startswith('v_writelane') or c.op.startswith('v_readlane')): n = max(n, 1)
    if p.stdata and (p.stdata & c.W): n = max(n, 2)
    return n

def fix_hazards(lines, verbose=True):
    def is_ins(l): return not (l.endswith(':') or l.startswith('.') or l.startswith(';'))
    added = 0
    out = []
    hist = []
    for l in lines:
        if not is_ins(l):
            out.append(l); continue
        c = Ins(l)
        dist, need = 0, 0
        for p in reversed(hist):
            k = need_states(p, c) - dist
            if k > need: need = k; why = p
            dist += p.states
            if dist > 20: break
        if need > 0:
            if verbose: print(f'[haz] +{need} between "{why.text}" and "{l}"')
            out.append(f's_nop {need-1}'); hist.append(Ins(out[-1])); added += 1
        out.append(l); hist.append(c)
        if c.op in ('s_endpgm', 's_branch'): hist = []
        hist = hist[-24:]
    lab = {l[:-1]: i for i, l in enumerate(out) if l.endswith(':')}
    for i, l in enumerate(out):
        if is_ins(l) and l.startswith(('s_branch', 's_cbranch')):
            tgt = l.split(';')[0].split()[1]
            pre = [Ins(x) for x in out[max(0, i-24):i+1] if is_ins(x)]
            post = [Ins(x) for x in out[lab[tgt]:lab[tgt]+30] if is_ins(x)]
            for j, c in enumerate(post[:20]):
                dist = sum(q.states for q in post[:j])
                for p in reversed(pre):
                    if need_states(p, c) > dist:
                        raise RuntimeError(f'hazard across branch {l}: "{p.text}" -> "{c.text}"')
                    dist += p.states
                    if dist > 20: break
                if c.op in ('s_branch', 's_endpgm'): break
    return out, added

class Gaps:
    def __init__(self, mfmas, cap=2):
        self.m = list(mfmas); n = len(self.m)
        self.s = [[] for _ in range(n)]; self.v = [[] for _ in range(n)]
        self.used = [0]*n; self.cap = cap
    def scalar(self, g, text, strict=False, latest=None, back=False):
        n = len(self.m); k = g
        if not strict:
            while 0 <= k < n and self.s[k]: k += -1 if back else 1
            if not (0 <= k < n) or (latest is not None and k > latest): k = g
        self.s[k].append(text); return k
    def vec(self, g, text, cost=1):
        self.v[g].append(text); self.used[g] += cost
    def free(self, g): return self.cap - self.used[g]
    def fill(self, chains, start=0, end=None, width=4):
        n = len(self.m) if end is None else end
        pos = [0]*len(chains); done = [False]*len(chains); last = [-1]*len(chains); lastT = [False]*len(chains)
        first = 0; g = start
        while first < len(chains):
            if g >= n: raise RuntimeError(f'out of gaps: chain {first}/{len(chains)}')
            progress = True
            while progress and self.free(g) > 0:
                progress = False
                act = [c for c in range(first, len(chains)) if not done[c]][:width]
                cand = []
                for c in act:
                    ch = chains[c]
                    if ch.get('earliest', 0) > g: continue
                    op = ch['ops'][pos[c]]
                    if len(op) > 2 and not all(done[d] for d in op[2]): continue
                    cost = op[1]
                    if min(cost, self.cap) > self.free(g): continue
                    cand.append((c, cost))
                if not cand: break
                pick = None
                if self.used[g] == 0:
                    big = [x for x in cand if x[1] >= 2]
                    if big: pick = big[0]
                if pick is None:
                    other = [x for x in cand if last[x[0]] != g]
                    pick = (other or cand)[0]
                c, cost = pick
                self.vec(g, chains[c]['ops'][pos[c]][0], cost); last[c] = g; pos[c] += 1
                if pos[c] == len(chains[c]['ops']):
                    done[c] = True; chains[c]['finished'] = g
                    dl = chains[c].get('deadline')
                    if dl is not None and g > dl: raise RuntimeError(f'chain {c} missed deadline {dl} (at {g})')
                while first < len(chains) and done[first]: first += 1
                progress = True
            g += 1
        return g
    def emit(self, a):
        for i, m in enumerate(self.m):
            a(m)
            for t in self.s[i]: a(t)
            for t in self.v[i]: a(t)
```

```python
import sys, re, struct, math
from asmlib import *

NAME = 'recurrent_scan__ssm_conv_s4d__geglu_ffn__prompt'
L, D, F = 2048, 576, 4608
WS_H, WS_XNT, WS_ST, WS_KV, WS_PART = 0, 0x1400000, 0x1700000, 0x1A00000, 0x2000000
H_BYTES = 128*144*1024
T_BYTES = D*L*2
KV_V, KV_CH = 4160, 8320
PART_BYTES = 4*128*36*1024
def f2u(x): return struct.unpack('<I', struct.pack('<f', x))[0]
def fx(x): return hex(f2u(x))
LOG2E = 1.4426950408889634

def srd(a, d, base, size, add=0):
    if add == 0:
        a(f's_mov_b32 s{d}, s{base}\ns_mov_b32 s{d+1}, s{base+1}')
    elif add > 0:
        a(f's_add_u32 s{d}, s{base}, {add}\ns_addc_u32 s{d+1}, s{base+1}, 0')
    else:
        a(f's_sub_u32 s{d}, s{base}, {-add}\ns_subb_u32 s{d+1}, s{base+1}, 0')
    a(f's_mov_b32 s{d+2}, {size}\ns_mov_b32 s{d+3}, 0x20000')

def resolve_waits(lines, prev=None):
    prev = lines if prev is None else prev
    seq = list(prev) + list(lines); off = len(prev); out = []
    for i, l in enumerate(lines):
        m = re.match(r'@(vm|lg) (\S+)', l)
        if not m: out.append(l); continue
        kind, tag = m.groups(); n = 0; found = False
        for j in range(off+i-1, -1, -1):
            x = seq[j]
            isk = x.startswith(('buffer_', 'global_')) if kind == 'vm' else x.startswith('ds_')
            if not isk: continue
            t = re.search(r'tag=(\S+)', x)
            if t and t.group(1) == tag: found = True; break
            if t and not t.group(1).startswith('p'): n += 1
        assert found, (l, i)
        mx = 63 if kind == 'vm' else 15
        out.append(f's_waitcnt {"vmcnt" if kind=="vm" else "lgkmcnt"}({min(n, mx)})')
    return out

STAMP = [False]
WS_DBG = 0x8000000
def stamp(a, i):
    if not STAMP[0]: return
    a(f's_memtime s[96:97]\ns_memrealtime s[98:99]\ns_waitcnt lgkmcnt(0)\nv_writelane_b32 v254, s96, {i}\nv_writelane_b32 v255, s98, {i}')
def stamp_out(a, kidx, ws):
    if not STAMP[0]: return
    a(f"""
    s_waitcnt vmcnt(0)
    """)
    stamp(a, 15)
    a(f"""
    s_lshl_b32 s96, s2, 2
    s_add_u32 s96, s96, s24
    s_lshl_b32 s96, s96, 9
    s_add_u32 s96, s96, {WS_DBG + kidx*0x100000}
    v_mbcnt_lo_u32_b32 v253, -1, 0
    v_mbcnt_hi_u32_b32 v253, -1, v253
    v_lshl_add_u32 v253, v253, 3, s96
    global_store_dwordx2 v253, v[254:255], s[{ws}:{ws+1}]
    """)

def bf16r(a, dst, src):
    a(f'v_cvt_pk_bf16_f32 v{dst}, v{src}, v{src}\nv_and_b32 v{dst}, 0xffff0000, v{dst}')

def cmul(o, x, w):
    return [f'v_pk_mul_f32 {vr(o,2)}, {vr(x,2)}, {vr(w,2)} op_sel:[0,0] op_sel_hi:[1,0]',
            f'v_pk_fma_f32 {vr(o,2)}, {vr(x,2)}, {vr(w,2)}, {vr(o,2)} op_sel:[1,1,0] op_sel_hi:[0,1,1] neg_lo:[0,1,0]']

def a_point(sig, hh):
    if sig <= 4: return 4*hh + sig
    if sig <= 7: return 256 + 4*hh + 2*(sig-5)
    if sig <= 10: return 512 + 256*hh + 4*(sig-8)
    if sig <= 12: return 1024 + 512*hh + 8*(sig-11)
    if sig <= 14: return 1280 + 512*hh + 8*(sig-13)
    return 0

def kgen_kernel(a):
    a.label('kgen_kernel')
    a('''
    s_cmp_ge_u32 s2, 144
    s_cbranch_scc1 L_kg_end
    s_load_dwordx4 s[4:7], s[0:1], 8
    s_load_dwordx4 s[8:11], s[0:1], 24
    s_load_dwordx2 s[12:13], s[0:1], 40
    s_load_dwordx2 s[14:15], s[0:1], 104
    v_lshrrev_b32 v1, 6, v0
    v_and_b32 v0, 63, v0
    v_readfirstlane_b32 s16, v1
    s_lshl_b32 s17, s2, 2
    s_add_u32 s17, s17, s16            ; channel d
    s_lshl_b32 s18, s17, 8
    v_lshl_add_u32 v1, v0, 2, s18
    s_lshl_b32 s18, s17, 1
    v_mov_b32 v2, s18
    s_lshl_b32 s19, s16, 15
    s_waitcnt lgkmcnt(0)
    global_load_dword v4, v1, s[4:5]
    global_load_dword v5, v1, s[6:7]
    global_load_dword v6, v1, s[8:9]
    global_load_dword v7, v1, s[10:11]
    global_load_ushort v3, v2, s[12:13]
    ''')
    a(f's_mul_i32 s18, s17, {KV_CH}\ns_add_u32 s18, s18, {WS_KV}\ns_add_u32 s20, s14, s18\ns_addc_u32 s21, s15, 0\ns_add_u32 s22, s20, {KV_V}\ns_addc_u32 s23, s21, 0')
    a('v_and_b32 v18, 7, v0\nv_lshl_add_u32 v19, v0, 7, s19')
    for u in range(8):
        a(f'v_xor_b32 v{8+u}, {u}, v18\nv_lshl_add_u32 v{8+u}, v{8+u}, 4, v19')
    a('''
    v_lshrrev_b32 v18, 5, v0           ; G>>1 = hh
    v_bfe_u32 v19, v0, 2, 2            ; rr
    v_lshl_add_u32 v16, v18, 3, v19
    v_lshl_add_u32 v16, v16, 7, s19
    v_bfe_u32 v20, v0, 4, 1
    v_bfe_u32 v21, v0, 1, 1
    v_lshl_add_u32 v20, v20, 1, v21
    v_xor_b32 v20, v20, v19
    v_lshl_add_u32 v16, v20, 4, v16
    v_and_b32 v20, 1, v0
    v_lshl_add_u32 v16, v20, 3, v16
    v_xor_b32 v17, 64, v16
    s_waitcnt vmcnt(0)
    v_lshlrev_b32 v3, 16, v3
    ''')
    a(f'v_mul_f32 v3, {fx(LOG2E)}, v3\nv_exp_f32 v3, v3')
    bf16r(a, 3, 3)
    a('''
    v_and_b32 v20, 0x7fff0000, v6
    v_and_b32 v21, 0x7fff0000, v7
    v_lshlrev_b32 v22, 16, v6
    v_lshlrev_b32 v23, 16, v7
    v_and_b32 v22, 0x7fff0000, v22
    v_and_b32 v23, 0x7fff0000, v23
    v_max_u32 v20, v20, v21
    v_max_u32 v22, v22, v23
    v_max_u32 v20, v20, v22
    v_max_u32_dpp v20, v20, v20 quad_perm:[1,0,3,2] row_mask:0xf bank_mask:0xf
    v_max_u32_dpp v20, v20, v20 quad_perm:[2,3,0,1] row_mask:0xf bank_mask:0xf
    v_max_u32_dpp v20, v20, v20 row_half_mirror row_mask:0xf bank_mask:0xf
    v_max_u32_dpp v20, v20, v20 row_mirror row_mask:0xf bank_mask:0xf
    v_readlane_b32 s24, v20, 0
    v_readlane_b32 s25, v20, 16
    v_readlane_b32 s26, v20, 32
    v_readlane_b32 s27, v20, 48
    s_max_u32 s24, s24, s25
    s_max_u32 s26, s26, s27
    s_max_u32 s24, s24, s26
    s_lshr_b32 s24, s24, 23
    s_max_u32 s24, s24, 40
    s_min_u32 s24, s24, 250
    s_sub_u32 s25, 266, s24            ; A scale = 2^(12-(e-127))
    s_lshl_b32 s25, s25, 23
    s_sub_u32 s26, s24, 25             ; undo: 2 * 2^(e-127) * 2^-26
    s_lshl_b32 s26, s26, 23
    ''')
    W = {1: [24, 30], 8: [26, 32], 256: [28, 34]}
    AP = [40, 100]
    pts = sorted({a_point(s, h) for s in range(16) for h in range(2)})
    idx = {p: i for i, p in enumerate(pts)}
    assert len(pts) == 28
    for nn in range(2):
        un = (lambda d, s: f'v_lshlrev_b32 v{d}, 16, v{s}') if nn == 0 else (lambda d, s: f'v_and_b32 v{d}, 0xffff0000, v{s}')
        a(un(20, 4)); a(un(21, 5))
        a(f'v_mul_f32 v20, {fx(LOG2E)}, v20\nv_exp_f32 v20, v20')
        bf16r(a, 20, 20)
        a(f'v_mul_f32 v20, v20, v3\nv_mul_f32 v21, v21, v3')
        a(f'v_mul_f32 v20, {fx(-LOG2E)}, v20\nv_mul_f32 v21, 0.15915494, v21')
        for p in (1, 8, 256):
            w = W[p][nn]
            a(f'v_mul_f32 v22, {fx(float(p))}, v20\nv_mul_f32 v23, {fx(float(p))}, v21\nv_exp_f32 v22, v22\nv_fract_f32 v23, v23')
            a(f'v_cos_f32 v{w}, v23\nv_sin_f32 v{w+1}, v23\ns_nop 0\nv_mul_f32 v{w}, v{w}, v22\nv_mul_f32 v{w+1}, v{w+1}, v22')
        c0 = AP[nn] + 2*idx[0]
        a(un(c0, 6)); a(un(c0+1, 7))
        a(f'v_mul_f32 v{c0}, s25, v{c0}\nv_mul_f32 v{c0+1}, s25, v{c0+1}')
    def both(fn):
        x, y = fn(0), fn(1)
        for p, q in zip(x, y): a(p); a(q)
    for p in pts[1:]:
        if p <= 8: both(lambda nn: cmul(AP[nn]+2*idx[p], AP[nn]+2*idx[p-1], W[1][nn]))
        else: both(lambda nn: cmul(AP[nn]+2*idx[p], AP[nn]+2*idx[p-256], W[256][nn]))
    T0 = 160
    k = 0
    for nn in range(2):
        for comp in range(2):
            ng = '-' if comp else ''
            for u in range(4):
                t = T0 + 4*(k % 4); k += 1
                row = [a_point(4*u + (r & 3), r >> 2) for r in range(8)]
                for j in range(4):
                    a(f'v_cvt_pk_f16_f32 v{t+j}, {ng}v{AP[nn]+2*idx[row[2*j]]+comp}, {ng}v{AP[nn]+2*idx[row[2*j+1]]+comp}')
                a(f'ds_write_b128 v{8+u}, {vr(t,4)} offset:{(2*nn+comp)*8192}')
    BP = [180, 200]
    for nn in range(2): a(f'v_mov_b32 v{BP[nn]}, {fx(16384.0)}\nv_mov_b32 v{BP[nn]+1}, 0')
    for u in range(4):
        for j in range(8):
            if u == 0 and j == 0: continue
            both(lambda nn: cmul(BP[nn]+2*j, BP[nn]+2*((j-1) % 8), W[8][nn]))
        for nn in range(2):
            for comp in range(2):
                t = T0 + 4*(k % 4); k += 1
                for j in range(4):
                    a(f'v_cvt_pk_f16_f32 v{t+j}, v{BP[nn]+4*j+comp}, v{BP[nn]+4*j+2+comp}')
                a(f'ds_write_b128 v{12+u}, {vr(t,4)} offset:{(2*nn+comp)*8192}')
    a('s_waitcnt lgkmcnt(0)')
    FR, DD = 40, 180
    for half in range(2):
        for kk in range(8):
            kap = half*8 + kk; r = FR + kk*8
            a(f'ds_read_b64_tr_b16 {vr(r,2)}, v16 offset:{kap*2048}')
            a(f'ds_read_b64_tr_b16 {vr(r+2,2)}, v17 offset:{kap*2048+512}')
            a(f'ds_read_b64_tr_b16 {vr(r+4,2)}, v17 offset:{kap*2048}')
            a(f'ds_read_b64_tr_b16 {vr(r+6,2)}, v16 offset:{kap*2048+512}')
        a('s_waitcnt lgkmcnt(0)')
        for kk in range(8):
            r = FR + kk*8
            a(f'v_mfma_f32_32x32x16_f16 {vr(DD,16)}, {vr(r,4)}, {vr(r+4,4)}, {"0" if half==0 and kk==0 else vr(DD,16)}')
    a('''
    v_mul_f32 v3, s26, v3
    v_and_b32 v20, 31, v0
    v_lshlrev_b32 v20, 4, v20
    v_sub_u32 v20, 4080, v20           ; 4080 - 16 jj
    v_lshlrev_b32 v21, 3, v18
    v_sub_u32 v21, v20, v21
    v_lshlrev_b32 v22, 9, v18
    v_sub_u32 v22, v20, v22
    v_lshlrev_b32 v23, 10, v18
    v_sub_u32 v23, v20, v23
    v_and_b32 v24, 1, v0
    v_cmp_eq_u32 vcc, 1, v24
    ''')
    for s in range(15): a(f'v_mul_f32 v{DD+s}, v{DD+s}, v3')
    V = lambda s: DD+s
    a(f'v_cndmask_b32 v25, v{V(11)}, v{V(12)}, vcc\nv_cndmask_b32 v26, v{V(13)}, v{V(14)}, vcc')
    o = [40]
    def put(vals, addr, off, base):
        n = len(vals)//2; t = o[0]; o[0] += 4
        for j in range(n): a(f'v_cvt_pk_bf16_f32 v{t+j}, v{vals[2*j]}, v{vals[2*j+1]}')
        a(f'global_store_dwordx{n} v{addr}, {vr(t,n)}, s[{base}:{base+1}] offset:{off}')
    put([V(3), V(2), V(1), V(0)], 21, 8, 20); put([V(4), V(3), V(2), V(1)], 21, 8, 22)
    put([V(7), V(6), V(5), V(5)], 21, 8-512, 20); put([V(7), V(7), V(6), V(5)], 21, 8-512, 22)
    Q0, Q1, Q2 = V(8), V(9), V(10)
    put([Q2, Q2, Q1, Q1, Q1, Q0, Q0, Q0], 22, -1024, 20); put([Q2, Q2, Q2, Q1, Q1, Q1, Q0, Q0], 22, -1024, 22)
    for b in range(2):
        R0, R1, M = V(11+2*b), V(12+2*b), 25+b
        put([R1, R1, R1, M, R0, R0, R0, R0], 23, -2048-512*b, 20); put([R1, R1, R1, R1, M, R0, R0, R0], 23, -2048-512*b, 22)
    a(f'''
    v_mov_b32 v27, 0
    v_cvt_pk_bf16_f32 v28, v{V(0)}, v27
    v_cmp_eq_u32 vcc, 0, v0
    v_lshlrev_b32 v29, 2, v0
    v_add_u32 v29, 4096, v29
    v_cndmask_b32 v28, v27, v28, vcc
    s_mov_b64 exec, 0xffff
    global_store_dword v29, v27, s[20:21]
    global_store_dword v29, v28, s[22:23]
    ''')
    a.label('L_kg_end')
    a('s_endpgm')

GC0 = -2.0*math.sqrt(2.0/math.pi)*LOG2E
GC1 = GC0*0.044715
ACC, PEND, AF, XOV, TMP, HO = 16, 80, 144, 176, 208, 224
def xfrag(k, tt):
    return ar(k*16+tt*4, 4) if k < 16 else vr(XOV+(k-16)*16+tt*4, 4)

def geglu_chains(src, nfr, stores, dl=None, early=None):
    ch = []; tcount = 0
    for tt in range(4):
        ho = HO + 4*(tt & 1); cv = []
        for j in range(nfr):
            g0, u0 = src(2*j, tt), src(2*j+1, tt); mine = []
            for r in range(4):
                g, u, t = g0+r, u0+r, TMP + (tcount % 8); tcount += 1
                c = dict(ops=[(f'v_mul_f32 v{t}, v{g}, v{g}', 1), (f'v_mul_f32 v{u}, v{g}, v{u}', 1), (f'v_fma_f32 v{t}, v{t}, s32, v9', 1),
                              (f'v_mul_f32 v{g}, v{g}, v{t}', 1), (f'v_exp_f32 v{g}, v{g}', 2), (f'v_add_f32 v{g}, 1.0, v{g}', 1),
                              (f'v_rcp_f32 v{g}, v{g}', 2), (f'v_mul_f32 v{u}, v{u}, v{g}', 1)])
                if dl: c['deadline'] = dl(2*j, tt)
                if early: c['earliest'] = early(2*j+1, tt)
                ch.append(c); mine.append(len(ch)-1)
                if r & 1:
                    c2 = dict(ops=[(f'v_cvt_pk_bf16_f32 v{ho+2*j+(r>>1)}, v{u-1}, v{u}', 1, mine[-2:])])
                    if dl: c2['deadline'] = dl(2*j+1, tt)
                    ch.append(c2); cv.append(len(ch)-1)
        ch.append(dict(ops=[(stores(tt, ho), 3, cv)]))
    return ch

def gemm1_kernel(a):
    a.label('gemm1_kernel')
    a('''
    s_cmp_ge_u32 s2, 256
    s_cbranch_scc1 L_g1_end
    ''')
    stamp(a, 0)
    a('''
    s_load_dwordx2 s[70:71], s[0:1], 0
    s_load_dwordx4 s[72:75], s[0:1], 64
    s_load_dwordx2 s[76:77], s[0:1], 104
    v_lshrrev_b32 v1, 6, v0
    v_and_b32 v0, 63, v0
    v_readfirstlane_b32 s24, v1
    s_and_b32 s3, s2, 7
    s_lshr_b32 s31, s2, 3
    s_and_b32 s25, s3, 1
    s_lshl_b32 s25, s25, 3
    s_lshr_b32 s33, s31, 2
    s_add_u32 s25, s25, s33            ; m
    s_lshr_b32 s26, s3, 1
    s_lshl_b32 s26, s26, 2
    s_and_b32 s33, s31, 3
    s_add_u32 s26, s26, s33            ; ft
    s_add_u32 s27, s25, s26
    s_mul_i32 s33, s27, 57
    s_lshr_b32 s33, s33, 9
    s_mul_i32 s33, s33, 9
    s_sub_u32 s27, s27, s33
    s_mov_b32 s33, s27
    ''')
    for j in range(9):
        a(f's_lshl_b32 s{60+j}, s33, 7\ns_mul_i32 s{40+2*j}, s33, {64*9216}\ns_add_u32 s{41+2*j}, s{40+2*j}, {32*9216}')
        if j < 8: a(f's_add_u32 s33, s33, 1\ns_cmp_eq_u32 s33, 9\ns_cselect_b32 s33, 0, s33')
    a(f'''
    v_lshrrev_b32 v10, 3, v0
    v_and_b32 v11, 7, v0               ; unit
    s_lshl_b32 s33, s25, 7
    s_lshl_b32 s34, s24, 5
    s_add_u32 s33, s33, s34
    v_add_u32 v12, s33, v10
    v_mul_u32_u24 v12, 1152, v12
    v_lshl_add_u32 v12, v11, 4, v12
    v_add_u32 v13, {8*1152}, v12
    v_add_u32 v14, {16*1152}, v12
    v_add_u32 v15, {24*1152}, v12
    s_waitcnt lgkmcnt(0)
    ''')
    srd(a, 4, 70, L*D*2)
    RAW = 16
    raw = lambda j, rg: RAW + (j*4+rg)*4
    for j in range(9):
        for rg in range(4): a(f'buffer_load_dwordx4 {vr(raw(j,rg),4)}, v{12+rg}, s[4:7], s{60+j} offen')
    srd(a, 8, 72, D*F*2); srd(a, 12, 74, D*F*2+1024, -1024)
    srd(a, 16, 76, 0, WS_H); srd(a, 20, 76, T_BYTES, WS_XNT)
    a(f'''
    s_and_b32 s35, s26, 1              ; odd
    s_mul_i32 s36, s26, 576
    s_lshr_b32 s36, s36, 7             ; line L0
    s_add_u32 s37, s36, s35
    s_lshl_b32 s33, s24, 3
    v_add_u32 v1, s33, v10
    v_mul_u32_u24 v1, 9216, v1
    v_bfe_u32 v2, v0, 4, 1
    s_and_b32 s33, s24, 1
    s_lshl_b32 s33, s33, 1
    v_or_b32 v2, s33, v2
    v_lshlrev_b32 v2, 1, v2
    v_xor_b32 v2, v2, v11
    v_lshl_add_u32 v1, v2, 4, v1
    s_lshl_b32 s33, s37, 7
    v_add_u32 v1, s33, v1
    s_lshl_b32 s28, s24, 11
    ''')
    LA = 13
    def dma(k):
        return (f's_add_u32 m0, s28, {k*8192}', f'buffer_load_dwordx4 v1, s[8:11], s{40+k} offen lds ; tag=w{k}',
                f'buffer_load_dwordx4 v1, s[12:15], s{40+k} offen offset:1024 lds ; tag=w{k}')
    pro = []
    for k in range(LA): pro += list(dma(k))
    for l in pro: a(l)
    a(f'''
    v_lshrrev_b32 v208, 4, v0          ; q
    v_bfe_u32 v209, v0, 2, 2           ; rr
    v_and_b32 v210, 3, v0              ; c
    v_lshlrev_b32 v2, 11, v208
    v_lshl_add_u32 v2, v209, 7, v2
    v_lshl_add_u32 v2, v210, 3, v2
    v_and_b32 v211, 1, v208
    v_lshlrev_b32 v211, 1, v211
    v_lshrrev_b32 v212, 1, v209
    v_or_b32 v211, v211, v212          ; sw
    s_lshr_b32 s38, s24, 1             ; fh
    s_and_b32 s39, s24, 1              ; tg
    s_lshl_b32 s33, s38, 1
    v_xor_b32 v211, s33, v211
    v_lshl_add_u32 v2, v211, 5, v2
    v_xor_b32 v3, 32, v2
    v_add_u32 v4, 0x10000, v2
    v_add_u32 v5, 0x10000, v3
    v_add_u32 v6, 0x20000, v2
    v_add_u32 v7, 0x20000, v3
    s_lshl_b32 s34, s35, 1
    s_add_u32 s34, s34, s38
    s_xor_b32 s34, s34, s33
    s_lshl_b32 s58, s34, 5
    v_xor_b32 v232, s58, v2
    v_xor_b32 v233, s58, v4
    v_xor_b32 v234, s58, v6
    s_mul_i32 s33, s39, {4*144*1024}
    s_lshl_b32 s34, s38, 10
    s_add_u32 s34, s33, s34
    v_lshl_add_u32 v8, v0, 4, s34
    s_lshl_b32 s34, s38, 3
    s_add_u32 s34, s33, s34
    v_lshl_add_u32 v235, v0, 4, s34
    s_mul_i32 s59, s25, {8*144*1024}
    s_lshl_b32 s33, s37, 11
    s_add_u32 s30, s59, s33
    s_sub_u32 s30, s30, 2048
    s_mov_b32 s32, {fx(GC1)}
    v_mov_b32 v9, {fx(GC0)}
    s_mov_b32 s33, 0x3f803f80
    ''')
    stamp(a, 1)
    S, Q = 208, 212
    for rg in range(4): a(f'v_mov_b32 v{S+rg}, 0\nv_mov_b32 v{Q+rg}, 0')
    for j in range(9):
        a(f's_waitcnt vmcnt({min(63, 2*LA + 4*(8-j))})')
        for r in range(4):
            for rg in range(4):
                x = raw(j, rg)+r
                a(f'v_dot2c_f32_bf16 v{S+rg}, s33, v{x}\nv_dot2c_f32_bf16 v{Q+rg}, v{x}, v{x}')
    stamp(a, 2)
    for pat in ('quad_perm:[1,0,3,2]', 'quad_perm:[2,3,0,1]', 'row_half_mirror'):
        for r in range(8): a(f'v_add_f32_dpp v{S+r}, v{S+r}, v{S+r} {pat} row_mask:0xf bank_mask:0xf')
    for rg in range(4): a(f'v_mul_f32 v{S+rg}, {fx(1.0/D)}, v{S+rg}\nv_mul_f32 v{Q+rg}, {fx(1.0/D)}, v{Q+rg}')
    for rg in range(4): a(f'v_fma_f32 v{Q+rg}, -v{S+rg}, v{S+rg}, v{Q+rg}\nv_max_f32 v{Q+rg}, 0, v{Q+rg}')
    for rg in range(4): bf16r(a, S+rg, S+rg); bf16r(a, Q+rg, Q+rg)
    for rg in range(4): a(f'v_add_f32 v{Q+rg}, {fx(1e-5)}, v{Q+rg}'); bf16r(a, Q+rg, Q+rg)
    for rg in range(4): a(f'v_sqrt_f32 v{Q+rg}, v{Q+rg}')
    for rg in range(4): bf16r(a, Q+rg, Q+rg)
    for rg in range(4): a(f'v_rcp_f32 v{Q+rg}, v{Q+rg}')
    for rg in range(4): a(f'v_mov_b32 v{216+2*rg}, v{S+rg}\nv_mov_b32 v{224+2*rg}, v{Q+rg}')
    XS = 114688
    a(f'''
    v_lshrrev_b32 v236, 4, v0
    v_xor_b32 v237, v236, v11
    s_lshl_b32 s33, s24, 12
    s_add_u32 s33, s33, {XS}
    v_lshl_add_u32 v238, v10, 7, s33
    v_lshl_add_u32 v12, v237, 4, v238
    v_xor_b32 v13, 64, v12
    v_and_b32 v237, 15, v0             ; t
    v_lshrrev_b32 v238, 1, v237
    v_xor_b32 v238, v238, v236
    s_lshl_b32 s33, s39, 13
    s_add_u32 s33, s33, {XS}
    v_lshl_add_u32 v14, v237, 7, s33
    v_lshl_add_u32 v14, v238, 4, v14
    v_xor_b32 v15, 64, v14             ; ks=1
    ''')
    tq = 0
    for rnd in range(3):
        for jj in range(3):
            j = rnd*3 + jj
            for rg in range(4):
                ts = []
                for r in range(4): ts.append(240 + 2*(tq % 4)); tq += 1
                x0 = raw(j, rg)
                for r in range(4): a(f'v_lshlrev_b32 v{ts[r]}, 16, v{x0+r}\nv_and_b32 v{ts[r]+1}, 0xffff0000, v{x0+r}')
                for r in range(4): a(f'v_pk_add_f32 {vr(ts[r],2)}, {vr(ts[r],2)}, {vr(216+2*rg,2)} op_sel_hi:[1,0] neg_lo:[0,1] neg_hi:[0,1]')
                for r in range(4): a(f'v_cvt_pk_bf16_f32 v{x0+r}, v{ts[r]}, v{ts[r]+1}')
                for r in range(4): a(f'v_lshlrev_b32 v{ts[r]}, 16, v{x0+r}\nv_and_b32 v{ts[r]+1}, 0xffff0000, v{x0+r}')
                for r in range(4): a(f'v_pk_mul_f32 {vr(ts[r],2)}, {vr(ts[r],2)}, {vr(224+2*rg,2)} op_sel_hi:[1,0]')
                for r in range(4): a(f'v_cvt_pk_bf16_f32 v{x0+r}, v{ts[r]}, v{ts[r]+1}')
                if rnd > 0 and jj == 0 and rg == 0: a('s_waitcnt lgkmcnt(0)\ns_barrier')
                a(f'ds_write_b128 v{12+(rg&1)}, {vr(x0,4)} offset:{jj*16384 + rg*1024}')
        a('s_waitcnt lgkmcnt(0)\ns_barrier')
        for jj in range(3):
            for ks in range(2):
                for tt in range(4):
                    a(f'ds_read_b128 {xfrag((rnd*3+jj)*2+ks, tt)}, v{14+ks} offset:{jj*16384 + tt*2048}')
        if rnd == 0:
            a(f'''
            s_cmp_ge_u32 s26, 9
            s_cbranch_scc1 L_g1_noxt
            v_bfe_u32 v160, v0, 2, 2           ; rr
            v_lshl_add_u32 v161, v236, 3, v160 ; 8q + rr
            v_lshrrev_b32 v162, 1, v161
            v_and_b32 v162, 7, v162
            v_bfe_u32 v163, v0, 1, 1
            s_lshl_b32 s33, s24, 1
            v_or_b32 v163, s33, v163
            v_xor_b32 v162, v162, v163
            v_lshlrev_b32 v161, 7, v161
            v_lshl_add_u32 v161, v162, 4, v161
            v_and_b32 v163, 1, v0
            v_lshl_add_u32 v161, v163, 3, v161
            v_add_u32 v161, {XS}, v161
            v_xor_b32 v162, 32, v161
            s_lshl_b32 s33, s24, 4
            v_add_u32 v163, s33, v237
            v_lshlrev_b32 v163, 12, v163
            v_lshl_add_u32 v163, v236, 4, v163
            s_lshl_b32 s33, s27, 18
            s_lshl_b32 s34, s25, 8
            s_add_u32 s33, s33, s34
            ''')
            for i in range(4):
                a(f'ds_read_b64_tr_b16 {vr(16+4*i,2)}, v161 offset:{i*4096}\nds_read_b64_tr_b16 {vr(18+4*i,2)}, v162 offset:{i*4096+512}')
            a('s_waitcnt lgkmcnt(0)')
            for i in range(4): a(f'buffer_store_dwordx4 {vr(16+4*i,4)}, v163, s[20:23], s33 offen offset:{64*i}')
            a.label('L_g1_noxt')
    FO = [(0, 0), (1, 0), (0, 1), (1, 1)]
    def rd(k, i, half, areg=None, tagk=None):
        mat, j = FO[i]; off = k*8192 + mat*1024 + half*512
        reg = (2 + 2*(off >> 16) + j) if areg is None else areg(off >> 16)
        dst = AF + ((k & 1)*4 + i)*4 + 2*half
        return f'ds_read_b64_tr_b16 {vr(dst,2)}, v{reg} offset:{off & 0xffff} ; tag=a{k}_{i}'
    pre = [f's_waitcnt vmcnt({2*(LA-3)}) lgkmcnt(0)', 's_barrier'] + [rd(0, i, h) for i in range(4) for h in range(2)]
    pre += ['s_mov_b32 s29, 0', 's_mov_b32 s31, 128', 's_mov_b32 s34, 0', 's_waitcnt lgkmcnt(0)']
    stamp(a, 3)
    for l in pre: a(l)
    acc = lambda i, tt: ACC + (i*4+tt)*4
    pend = lambda i, tt: PEND + (i*4+tt)*4
    ms = []
    for k in range(18):
        for i in range(4):
            for tt in range(4):
                d = pend(i, tt) if k == 17 else acc(i, tt)
                ms.append(f'v_mfma_f32_16x16x32_bf16 {vr(d,4)}, {vr(AF+((k&1)*4+i)*4,4)}, {xfrag(k,tt)}, {"0" if k==0 else vr(acc(i,tt),4)}')
    g = Gaps(ms)
    for k in range(18):
        b = k*16; kn = (k+1) % 18
        if k % 3 == 2:
            g.scalar(b, f'@vm w{(k+3) % 18}', strict=True); g.scalar(b+1, 's_barrier', strict=True)
        rp = [1, 2, 4, 5, 8, 9, 12, 13]
        for i in range(4):
            for h in range(2):
                ar_ = (lambda w: 10) if (k == 17 and FO[i][1] == 0) else None
                g.vec(b+rp[2*i+h], rd(kn, i, h, ar_))
        for i in range(4):
            nk, ni = (k, i+1) if i < 3 else (kn, 0)
            g.scalar(b+4*i+3, f'@lg a{nk}_{ni}', strict=True)
        m0, d0, d1 = dma((k+LA) % 18)
        g.scalar(b+5, m0, strict=True); g.vec(b+6, d0, 3); g.vec(b+14, d1, 3)
        if k == 18-LA: g.vec(b+2, 'v_add_u32 v1, s31, v1')
        if k == 16: g.vec(b+2, 'v_xor_b32 v10, s34, v2')
    for gi, t in [(8, 's_add_u32 s29, s29, 1'), (9, 's_cmp_eq_u32 s29, 4'), (10, 's_cselect_b32 s34, s58, 0'), (12, 's_cselect_b32 s33, s35, 0'),
                  (13, 's_mul_i32 s33, s33, 640'), (14, 's_sub_u32 s31, 128, s33')]:
        g.scalar(gi, t, strict=True)
    for tt in range(1, 4): g.scalar(16+tt, f's_add_u32 s{77+tt}, s30, {tt*147456}')
    st = lambda tt, ho: f'buffer_store_dwordx4 {vr(ho,4)}, v8, s[16:19], s{30 if tt==0 else 77+tt} offen'
    ch = geglu_chains(pend, 2, st, dl=lambda i, tt: 17*16 + i*4 + tt - 1, early=lambda i, tt: max(0, i*4+tt-12))
    endg = g.fill(ch, width=5)
    print('gemm1 body: geglu ends at gap', endg, 'of', len(ms))
    assert endg <= 286
    g.scalar(286, 's_cmp_lt_u32 s29, 4', strict=True)
    body = Asm(); g.emit(body)
    bl = resolve_waits(body.lines)
    a('.p2align 6'); a.label('L_g1_loop')
    if STAMP[0]:
        a('s_memtime s[96:97]\ns_memrealtime s[98:99]\ns_add_u32 m0, s29, 4\ns_waitcnt lgkmcnt(0)\nv_writelane_b32 v254, s96, m0\nv_writelane_b32 v255, s98, m0')
    for l in bl: a(l)
    a(f's_mov_b32 s18, {H_BYTES}\ns_cbranch_scc0 L_g1_half\ns_add_u32 s30, s30, 2048\ns_branch L_g1_loop')
    a.label('L_g1_half')
    stamp(a, 8)
    a('s_add_u32 s30, s30, 2048')
    ms = []
    for k in range(18):
        for i in range(2):
            for tt in range(4):
                ms.append(f'v_mfma_f32_16x16x32_bf16 {vr(acc(i,tt),4)}, {vr(AF+((k&1)*4+i)*4,4)}, {xfrag(k,tt)}, {"0" if k==0 else vr(acc(i,tt),4)}')
    g = Gaps(ms, cap=3)
    for k in range(18):
        b = k*8
        if k % 3 == 2 and k < 17:
            g.scalar(b, f'@vm w{k+3}', strict=True); g.scalar(b, 's_barrier', strict=True)
        if k < 17:
            for i in range(2):
                for h in range(2): g.vec(b+[0, 1, 2, 4][2*i+h], rd(k+1, i, h, lambda w: 232+w))
        g.scalar(b+3, f'@lg a{k}_1', strict=True)
        if k < 17: g.scalar(b+7, f'@lg a{k+1}_0', strict=True)
        if k + LA < 18:
            m0, d0, d1 = dma(k+LA)
            g.scalar(b+2, m0, strict=True); g.vec(b+3, d0, 3); g.vec(b+6, d1, 3)
    for tt in range(1, 4): g.scalar(3+tt, f's_add_u32 s{77+tt}, s30, {tt*147456}')
    ch = geglu_chains(pend, 2, st, early=lambda i, tt: max(0, i*4+tt-12))
    npad = 40
    g.m += ['s_nop 0']*npad; g.s += [[] for _ in range(npad)]; g.v += [[] for _ in range(npad)]; g.used += [0]*npad
    endg = g.fill(ch, width=5)
    print('gemm1 half: geglu ends at gap', endg, 'of', len(ms))
    n = max(endg, len(ms)); g.m = g.m[:n]
    body2 = Asm(); g.emit(body2)
    for l in resolve_waits(body2.lines, prev=body.lines): a(l)
    stamp(a, 9)
    a(f'''
    s_cmp_eq_u32 s35, 1
    s_cselect_b32 s33, 1, 8
    s_lshl_b32 s34, s36, 1
    s_add_u32 s33, s33, s34
    s_lshl_b32 s33, s33, 10
    s_add_u32 s30, s59, s33
    ''')
    for tt in range(1, 4): a(f's_add_u32 s{77+tt}, s30, {tt*147456}')
    st2 = lambda tt, ho: f'buffer_store_dwordx2 {vr(ho,2)}, v235, s[16:19], s{30 if tt==0 else 77+tt} offen'
    ch = geglu_chains(acc, 1, st2)
    g = Gaps(['']*200, cap=3); endg = g.fill(ch, width=5); g.m = g.m[:endg]
    g.emit(a)
    stamp(a, 10)
    stamp_out(a, 1, 76)
    a.label('L_g1_end')
    a('s_endpgm')

def kd(name, nv, acc_off, ns=100):
    return f'''.amdhsa_kernel {name}
  .amdhsa_next_free_vgpr {nv}
  .amdhsa_next_free_sgpr {ns}
  .amdhsa_accum_offset {acc_off}
  .amdhsa_group_segment_fixed_size 0
  .amdhsa_kernarg_size 112
  .amdhsa_user_sgpr_count 2
  .amdhsa_user_sgpr_kernarg_segment_ptr 1
  .amdhsa_system_sgpr_workgroup_id_x 1
.end_amdhsa_kernel
'''

def build(kernels, launches, path, verbose=False):
    hdr = open(f'cdna_kernels/{NAME}.s.ref').read().split('; Override launch')[0]
    s = hdr + ''.join(f'; @launch kernel={k} grid=({g},1,1) block=({b},1,1) lds={l}\n' for k, g, b, l in launches)
    s += '.amdgcn_target "amdgcn-amd-amdhsa--gfx950"\n.text\n'
    for name, fn, nv, ao in kernels:
        a = Asm(); fn(a)
        a.lines, n = fix_hazards(a.lines, verbose)
        print(name, 'instructions', len(a.lines), 'nops added', n)
        s += f'.globl {name}\n.p2align 8\n.type {name},@function\n' + a.text()
    s += '.section .rodata,"a"\n'
    for name, fn, nv, ao in kernels: s += '.p2align 6\n' + kd(name, nv, ao)
    open(path, 'w').write(s)

if __name__ == "__main__":
    import gen2
    gen2.main(sys.argv[1:])
```

```python
from gen import *

def ids(a):
    a('''
    v_lshrrev_b32 v1, 6, v0
    v_and_b32 v0, 63, v0
    v_readfirstlane_b32 s24, v1
    s_and_b32 s3, s2, 7
    s_lshr_b32 s31, s2, 3
    s_and_b32 s25, s3, 1
    s_lshl_b32 s25, s25, 3
    s_lshr_b32 s33, s31, 2
    s_add_u32 s25, s25, s33            ; m
    s_lshr_b32 s26, s3, 1              ; k split
    s_and_b32 s27, s31, 3
    ''')

G2ACC, G2AF, NF, PF = 32, 128, 8, 6
def g2acc(ct, tt): return G2ACC + (ct*2+tt)*4

def gemm2_role(a):
    srd(a, 8, 72, D*F*2+2048, -2048); srd(a, 12, 76, H_BYTES, WS_H); srd(a, 16, 76, PART_BYTES, WS_PART)
    a(f'''
    v_lshrrev_b32 v20, 3, v0
    v_and_b32 v21, 7, v0
    s_lshl_b32 s33, s24, 3
    v_add_u32 v1, s33, v20
    v_mul_u32_u24 v1, 1152, v1
    v_and_b32 v22, 6, v20
    v_xor_b32 v22, v22, v21
    v_lshl_add_u32 v1, v22, 4, v1
    s_mul_i32 s33, s27, 384
    s_add_u32 s33, s33, 2048
    v_add_u32 v1, s33, v1
    v_add_u32 v2, {(128-1024) & 0xffffffff}, v1
    v_add_u32 v3, {(256-2048) & 0xffffffff}, v1
    s_lshl_b32 s33, s25, 3
    s_lshl_b32 s34, s24, 1
    s_add_u32 s35, s33, s34
    s_mul_i32 s33, s35, {144*1024}
    v_lshl_add_u32 v4, v0, 4, s33
    v_add_u32 v5, {144*1024}, v4
    s_mul_i32 s28, s24, 3072
    s_and_b32 s33, s25, 7
    s_mul_i32 s33, s33, 9
    s_lshr_b32 s36, s33, 1             ; rotation 0..31
    s_mul_i32 s37, s26, 36
    s_add_u32 s33, s37, s36
    s_lshl_b32 s40, s33, 10
    s_mul_i32 s41, s33, {32*1152}
    s_add_u32 s33, s37, 36
    s_lshl_b32 s42, s33, 10
    s_lshl_b32 s43, s37, 10
    s_mul_i32 s44, s37, {32*1152}
    ''')
    LA = 8
    def loads(k):
        r = (k % 12)*8
        return [f'buffer_load_dwordx4 {ar(r,4)}, v4, s[12:15], s40 offen ; tag=h{k%12}', f'buffer_load_dwordx4 {ar(r+4,4)}, v5, s[12:15], s40 offen ; tag=h{k%12}',
                f'buffer_load_dwordx4 v1, s[8:11], s41 offen lds ; tag=w{k%12}', f'buffer_load_dwordx4 v2, s[8:11], s41 offen offset:1024 lds ; tag=w{k%12}',
                f'buffer_load_dwordx4 v3, s[8:11], s41 offen offset:2048 lds ; tag=w{k%12}']
    m0 = lambda k: f's_add_u32 m0, s28, {(k%12)*12288}'
    adv = ['s_add_u32 s40, s40, 1024', f's_add_u32 s41, s41, {32*1152}', 's_cmp_eq_u32 s40, s42', 's_cselect_b32 s40, s43, s40', 's_cselect_b32 s41, s44, s41']
    for k in range(LA):
        a(m0(k))
        for l in loads(k) + adv: a(l)
    a('''
    v_lshrrev_b32 v20, 4, v0           ; q
    v_bfe_u32 v21, v0, 2, 3            ; 4(q&1)+rr
    v_and_b32 v22, 3, v0
    v_lshrrev_b32 v23, 1, v20
    v_mul_u32_u24 v8, 3072, v23
    v_lshl_add_u32 v8, v21, 7, v8
    v_lshl_add_u32 v8, v22, 3, v8
    v_lshrrev_b32 v21, 1, v21
    v_lshl_add_u32 v8, v21, 5, v8
    v_xor_b32 v9, 32, v8
    v_xor_b32 v10, 64, v8
    v_xor_b32 v11, 96, v8
    ''')
    for w in (1, 2):
        for j in range(4): a(f'v_add_u32 v{8+4*w+j}, {w << 16}, v{8+j}')
    for r in range(96): a(f'v_mov_b32 v{G2ACC+r}, 0')
    def rd(n, half):
        n %= 144; k, ct = divmod(n, 12)
        off = k*12288 + (ct >> 2)*1024 + half*6144
        return f'ds_read_b64_tr_b16 {vr(G2AF+(n%NF)*4+2*half,2)}, v{8+4*(off>>16)+(ct&3)} offset:{off&0xffff} ; tag=a{n}'
    stamp(a, 1)
    a(f's_waitcnt vmcnt({5*(LA-2)})\ns_barrier')
    pre = [rd(n, h) for n in range(PF) for h in range(2)]
    for l in pre: a(l)
    a('s_mov_b32 s29, 0\ns_waitcnt lgkmcnt(0)')
    ms = []
    for k in range(12):
        for ct in range(12):
            for tt in range(2):
                ms.append(f'v_mfma_f32_16x16x32_bf16 {vr(g2acc(ct,tt),4)}, {vr(G2AF+((k*12+ct)%NF)*4,4)}, {ar(k*8+tt*4,4)}, {vr(g2acc(ct,tt),4)}')
    g = Gaps(ms)
    vmg = [3, 7, 11, 17, 21]
    for k in range(12):
        b = k*24
        for gi, l in zip(vmg, loads(k+LA)): g.vec(b+gi, l, 3)
        g.scalar(b+8, m0(k+LA), strict=True)
        for ct in range(12):
            n = k*12+ct
            g0, g1 = b+2*ct, b+2*ct+1
            if (g1-b) in vmg: g1 = g0
            g.vec(g0, rd(n+PF, 0)); g.vec(g1, rd(n+PF, 1))
            g.scalar(b+2*ct+1, f'@lg a{(n+1)%144}', strict=True)
        if k % 2 == 1:
            gb = b + 2*(12-PF)
            g.scalar(gb-2, f'@vm w{(k+2)%12}', strict=True); g.scalar(gb, 's_barrier', strict=True)
        for gi, l in zip([22, 24, 26, 28, 30], adv):
            pass
    for k in range(12):
        b = k*24
        g.scalar(b+14, adv[0], strict=True); g.scalar(b+16, adv[2], strict=True); g.scalar(b+18, adv[3], strict=True)
        g.scalar(b+20, f's_cselect_b32 s45, s46, s47', strict=True); g.scalar(b+22, 's_add_u32 s41, s41, s45', strict=True)
    b = (12-LA)*24
    g.scalar(b-24+2, 's_add_u32 s29, s29, 1', strict=True); g.scalar(b-24+4, 's_cmp_eq_u32 s29, 3', strict=True)
    g.scalar(b-24+6, 's_cselect_b32 s48, 0, s10', strict=True)
    g.scalar(b, 's_min_u32 s10, s10, s48', strict=True); g.scalar(b+2, 's_cselect_b32 s14, s14, s14', strict=True)
    g.s[b+2] = ['s_cmp_eq_u32 s48, 0', 's_cselect_b32 s14, 0, s14']
    body = Asm(); g.emit(body)
    a(f's_mov_b32 s47, {32*1152}\ns_mov_b32 s46, {(-35*32*1152) & 0xffffffff}')
    a('.p2align 6'); a.label('L_g2_loop')
    if STAMP[0]:
        a('s_memtime s[96:97]\ns_memrealtime s[98:99]\ns_add_u32 m0, s29, 4\ns_waitcnt lgkmcnt(0)\nv_writelane_b32 v254, s96, m0\nv_writelane_b32 v255, s98, m0')
    for l in resolve_waits(body.lines): a(l)
    a('s_cmp_lt_u32 s29, 3\ns_cbranch_scc1 L_g2_loop')
    stamp(a, 8)
    a(f'''
    s_lshl_b32 s33, s26, 7
    s_add_u32 s33, s33, s35
    s_mul_i32 s33, s33, 36
    s_mul_i32 s34, s27, 12
    s_add_u32 s33, s33, s34
    s_lshl_b32 s33, s33, 10
    v_lshlrev_b32 v4, 4, v0
    ''')
    for tt in range(2):
        for c4 in range(3):
            a(f's_add_u32 s34, s33, {tt*36*1024 + c4*4096}')
            for j in range(4): a(f'buffer_store_dwordx4 {vr(g2acc(c4*4+j,tt),4)}, v4, s[16:19], s34 offen offset:{j*1024}')

def conv_role(a):
    srd(a, 8, 76, D*KV_CH, WS_KV); srd(a, 12, 76, T_BYTES, WS_XNT); srd(a, 16, 76, T_BYTES, WS_ST)
    WB, UB, RB, NSL = 40448, 18432, 18432+13824, 6
    a(f'''
    s_lshl_b32 s33, s25, 2
    s_add_u32 s33, s33, s26
    s_mul_i32 s33, s33, 9
    s_add_u32 s50, s33, 8
    s_add_u32 s51, s33, s24
    s_add_u32 s52, s51, 4
    s_mul_i32 s28, s24, {WB}
    v_lshlrev_b32 v4, 4, v0
    ''')
    for i in range(3):
        a(f's_lshr_b32 s33, s{50+i}, 1\ns_lshl_b32 s33, s33, 2\ns_load_dword s{53+i}, s[74:75], s33')
        a(f's_mul_i32 s{56+i}, s{50+i}, {KV_CH}\ns_lshl_b32 s{59+i}, s{50+i}, 12')
    a('s_lshl_b32 s33, s24, 7\ns_sub_u32 s56, s56, s33')
    for i in range(3):
        a(f'''
        v_add_u32 v20, {64*i}, v0
        v_mul_u32_u24 v21, 10923, v20
        v_lshrrev_b32 v21, 16, v21         ; w = L/6
        v_mul_u32_u24 v22, 6, v21
        v_sub_u32 v22, v20, v22            ; unit
        v_bfe_u32 v23, v21, 1, 2           ; c'
        v_lshrrev_b32 v24, 3, v21
        v_and_b32 v25, 1, v21
        v_lshl_add_u32 v24, v24, 1, v25    ; g
        v_lshlrev_b32 v24, 9, v24
        v_sub_u32 v24, {2*(2016-224)}, v24
        v_lshl_add_u32 v24, v22, 4, v24
        v_and_b32 v25, 1, v23
        v_mul_u32_u24 v26, {KV_V}, v25
        v_add_u32 v24, v24, v26
        v_add_u32 v23, v23, v25
        v_lshl_add_u32 v{1+i}, v23, 1, v24
        ''')
    steps = [(0, 0), (0, 1)] + [(1, d) for d in range(8)] + [(2, d) for d in range(8)]
    def tdma(s):
        ci, d = steps[s]; sl = s % NSL
        out = [(f's_add_u32 s30, s{56+ci}, {(7-d)*64}', None)]
        for i in range(3): out.append((f's_add_u32 m0, s28, {sl*3072+i*1024}', f'buffer_load_dwordx4 v{1+i}, s[8:11], s30 offen lds ; tag=t{s}'))
        return out
    def udma(i):
        a(f's_add_u32 m0, s28, {UB + i*4608 + 512}')
        for j in range(4): a(f'buffer_load_dwordx4 v4, s[12:15], s{59+i} offen offset:{j*1024} lds ; tag=u{i}')
    pro = Asm(); sa = a; a = pro
    udma(0)
    for s in range(NSL):
        if s == 2: udma(1)
        for x, y in tdma(s):
            a(x)
            if y: a(y)
    udma(2)
    a = sa
    for l in pro.lines: a(l)
    a(f'''
    v_mov_b32 v20, 0
    v_mov_b32 v21, 0
    v_lshl_add_u32 v22, v0, 3, s28
    ds_write_b64 v22, v[20:21] offset:{UB}
    ds_write_b64 v22, v[20:21] offset:{UB+4608}
    ds_write_b64 v22, v[20:21] offset:{UB+2*4608}
    v_lshrrev_b32 v20, 4, v0           ; q
    v_and_b32 v21, 15, v0              ; r / n
    v_and_b32 v22, 3, v0
    v_sub_u32 v22, 3, v22
    v_mul_u32_u24 v5, 192, v22
    v_lshl_add_u32 v5, v20, 4, v5
    v_lshrrev_b32 v22, 2, v21
    v_lshlrev_b32 v22, 3, v22
    v_sub_u32 v5, v5, v22
    s_add_u32 s33, s28, 24
    v_add_u32 v5, s33, v5
    v_lshlrev_b32 v22, 5, v21
    v_lshl_add_u32 v6, v20, 4, v22
    v_add_u32 v6, s28, v6
    s_lshl_b32 s33, s24, 7
    v_subrev_u32 v7, s33, v6
    v_lshl_add_u32 v9, v20, 3, v22
    v_add_u32 v8, s28, v9
    s_lshl_b32 s33, s24, 10
    v_add_u32 v10, s33, v8
    v_add_u32 v11, s33, v9
    v_add_u32 v12, s28, v4
    s_lshl_b32 s33, s24, 11
    s_add_u32 s33, s33, {RB}
    v_add_u32 v13, s33, v4
    v_add_u32 v14, {2*WB}, v13
    s_waitcnt lgkmcnt(0)
    ''')
    for i in range(3): a(f's_and_b32 s33, s{50+i}, 1\ns_lshl_b32 s33, s33, 4\ns_lshr_b32 s{53+i}, s{53+i}, s33\ns_lshl_b32 s{53+i}, s{53+i}, 16')
    CA = [32, 64, 96]; E0 = 128
    tf = lambda s, g: ar((s & 1)*64 + g*4, 4)
    uf = lambda s, k: ar((s & 1)*64 + 32 + k*4, 4)
    def reads(s):
        ci, d = steps[s]; sl = s % NSL; out = []; b = (s & 1)*64
        for j in range(8):
            off = sl*3072 + (j >> 1)*768 + (j & 1)*96
            out.append(f'ds_read_b128 {uf(s,j)}, v{7 if ci==0 else 6} offset:{UB + ci*4608 + 512 + 512*j - 64*d - 32}')
            out.append(f'ds_read_b64 {ar(b+j*4,2)}, v5 offset:{off}')
            out.append(f'ds_read_b64 {ar(b+j*4+2,2)}, v5 offset:{off+8}')
        return out
    pre = ['@vm t0'] + reads(0) + ['s_waitcnt lgkmcnt(0)']
    ms = []
    for s, (ci, d) in enumerate(steps):
        seen = set()
        for g_ in range(8):
            for k in range(8-g_):
                nt = g_+k; c = vr(CA[ci]+nt*4, 4)
                first = d == 0 and nt not in seen; seen.add(nt)
                ms.append(f'v_mfma_f32_16x16x32_bf16 {c}, {tf(s,g_)}, {uf(s,k)}, {"0" if first else c}')
    g = Gaps(ms)
    for s in range(18):
        b = s*36
        if s+1 < 18:
            tag = f't{s+1}' if s+1 != 10 else None
            g.scalar(b, f'@vm t{s+1}', strict=True)
            for i, l in enumerate(reads(s+1)): g.vec(b+i+1, l)
            g.scalar(b+35, 's_waitcnt lgkmcnt(0)', strict=True)
        if s+NSL < 18:
            t = tdma(s+NSL)
            g.scalar(b+25, t[0][0], strict=True)
            for i in range(3): g.scalar(b+26+2*i, t[1+i][0], strict=True); g.vec(b+27+2*i, t[1+i][1], 3)
    def epi(tiles, ci, ureg, oreg, start, waits=True):
        ch = []
        for n, (y, off) in enumerate(tiles):
            u = E0 + 2*n
            for p in range(2):
                t = 160 + 4*((2*n+p) % 6); o = 192 + 2*(n % 4) + p
                ch.append(dict(earliest=start, ops=[(f'v_cvt_pk_bf16_f32 v{y+2*p}, v{y+2*p}, v{y+2*p+1}', 1), (f'v_lshlrev_b32 v{t}, 16, v{u+p}', 1), (f'v_and_b32 v{t+1}, 0xffff0000, v{u+p}', 1),
                      (f'v_mul_f32 v{t}, s{53+ci}, v{t}', 1), (f'v_mul_f32 v{t+1}, s{53+ci}, v{t+1}', 1), (f'v_and_b32 v{y+2*p+1}, 0xffff0000, v{y+2*p}', 1),
                      (f'v_cvt_pk_bf16_f32 v{t}, v{t}, v{t+1}', 1), (f'v_lshlrev_b32 v{y+2*p}, 16, v{y+2*p}', 1), (f'v_and_b32 v{t+1}, 0xffff0000, v{t}', 1),
                      (f'v_lshlrev_b32 v{t}, 16, v{t}', 1), (f'v_add_f32 v{t+1}, v{t+1}, v{y+2*p+1}', 1), (f'v_add_f32 v{t}, v{t}, v{y+2*p}', 1),
                      (f'v_cvt_pk_bf16_f32 v{o}, v{t}, v{t+1}', 1)]))
            ch.append(dict(ops=[(f'buffer_store_dwordx2 {vr(192+2*(n%4),2)}, v{oreg}, s[16:19], s{59+ci} offen offset:{off}', 2, [len(ch)-2, len(ch)-1])]))
        return ch
    def ureads(tiles, ci, ureg): return [f'ds_read_b64 {vr(E0+2*n,2)}, v{ureg} offset:{UB+ci*4608+512+off}' for n, (y, off) in enumerate(tiles)]
    b = 2*36
    for n in range(8): g.vec(b+8+2*n, f'ds_write_b128 v12, {vr(CA[0]+4*n,4)} offset:{RB+n*1024}')
    b = 3*36
    g.scalar(b+1, 's_barrier', strict=True)
    i = 0
    for wv in range(4):
        for t in range(2):
            g.vec(b+2+2*i, f'ds_read_b128 {vr(CA[0]+(wv*2+t)*4,4)}, v{13+(wv>>1)} offset:{(wv&1)*WB+t*1024}'); i += 1
    tiles = [(CA[0], 0), (CA[0]+4, 512)]
    for i, l in enumerate(ureads(tiles, 0, 10)): g.vec(b+20+2*i, l)
    ch = [dict(earliest=4*36, ops=[(f'v_add_f32 v{CA[0]+r}, v{CA[0]+r}, v{CA[0]+8+r}', 1), (f'v_add_f32 v{CA[0]+16+r}, v{CA[0]+16+r}, v{CA[0]+24+r}', 1),
                                   (f'v_add_f32 v{CA[0]+r}, v{CA[0]+r}, v{CA[0]+16+r}', 1)]) for r in range(8)]
    e = g.fill(ch, start=4*36, width=3)
    e = g.fill(epi(tiles, 0, 10, 11, e), start=e, width=3)
    assert e < 10*36
    tiles = [(CA[1]+4*n, n*512) for n in range(8)]
    for i, l in enumerate(ureads(tiles, 1, 8)): g.vec(9*36+2+2*i, l)
    e = g.fill(epi(tiles, 1, 8, 9, 10*36+8), start=10*36+8, width=3)
    print('conv: epilogue 1 ends at gap', e, 'of', len(ms))
    assert e < 17*36+16
    tiles = [(CA[2]+4*n, n*512) for n in range(8)]
    for i, l in enumerate(ureads(tiles, 2, 8)): g.vec(17*36+18+i, l)
    g.scalar(17*36+35, 's_waitcnt lgkmcnt(0)', strict=True)
    body = Asm()
    stamp(a, 1)
    for l in pre: body(l)
    stamp(body, 4)
    g.emit(body)
    for l in resolve_waits(body.lines, prev=pro.lines): a(l)
    stamp(a, 8)
    g = Gaps(['']*400, cap=2); e = g.fill(epi(tiles, 2, 8, 9, 0), width=3); g.m = g.m[:e]; g.emit(a)

def mid_kernel(a):
    a.label('mid_kernel')
    a('''
    s_cmp_ge_u32 s2, 256
    s_cbranch_scc1 L_mid_end
    ''')
    stamp(a, 0)
    a('''
    s_load_dwordx2 s[72:73], s[0:1], 80
    s_load_dwordx2 s[74:75], s[0:1], 48
    s_load_dwordx2 s[76:77], s[0:1], 104
    ''')
    ids(a)
    a('s_waitcnt lgkmcnt(0)\ns_cmp_eq_u32 s27, 3\ns_cbranch_scc1 L_mid_conv')
    gemm2_role(a)
    stamp(a, 10)
    stamp_out(a, 2, 76)
    a('s_endpgm')
    a.label('L_mid_conv')
    conv_role(a)
    stamp(a, 10)
    stamp_out(a, 2, 76)
    a.label('L_mid_end')
    a('s_endpgm')

def fin_kernel(a):
    a.label('fin_kernel')
    a('''
    s_cmp_ge_u32 s2, 256
    s_cbranch_scc1 L_fin_end
    ''')
    stamp(a, 0)
    a('''
    s_load_dwordx2 s[70:71], s[0:1], 0
    s_load_dwordx2 s[72:73], s[0:1], 88
    s_load_dwordx2 s[76:77], s[0:1], 104
    ''')
    ids(a)
    a('s_waitcnt lgkmcnt(0)\ns_cmp_eq_u32 s27, 3\ns_cbranch_scc1 L_fin_end')
    srd(a, 4, 70, L*D*2); srd(a, 8, 72, L*D*2); srd(a, 12, 76, T_BYTES, WS_ST); srd(a, 16, 76, PART_BYTES, WS_PART)
    a(f'''
    s_lshl_b32 s33, s25, 3
    s_lshl_b32 s34, s24, 1
    s_add_u32 s35, s33, s34
    s_mul_i32 s36, s27, 12
    s_mul_i32 s33, s26, 3
    s_add_u32 s36, s36, s33
    s_mul_i32 s33, s35, 36
    s_add_u32 s33, s33, s36
    s_lshl_b32 s33, s33, 10
    v_lshlrev_b32 v4, 4, v0
    v_lshrrev_b32 v20, 2, v0
    v_and_b32 v21, 3, v0
    v_lshlrev_b32 v1, 12, v20
    v_lshl_add_u32 v1, v21, 4, v1
    s_lshl_b32 s37, s36, 16
    s_lshl_b32 s34, s35, 5
    s_add_u32 s37, s37, s34
    s_mul_i32 s28, s24, 3072
    ''')
    for j in range(3):
        a(f's_add_u32 m0, s28, {j*1024}\ns_add_u32 s34, s37, {j*65536}\nbuffer_load_dwordx4 v1, s[12:15], s34 offen lds')
    P = lambda s, j, tt: 32 + ((s*3+j)*2+tt)*4
    for s in range(4):
        for tt in range(2):
            a(f's_add_u32 s34, s33, {s*128*36*1024 + tt*36*1024}')
            for j in range(3): a(f'buffer_load_dwordx4 {vr(P(s,j,tt),4)}, v4, s[16:19], s34 offen offset:{j*1024}')
    a(f'''
    v_and_b32 v22, 15, v0
    v_lshrrev_b32 v23, 4, v0
    v_mul_u32_u24 v2, 1152, v22
    v_lshl_add_u32 v2, v23, 3, v2
    s_mul_i32 s38, s35, {16*1152}
    s_lshl_b32 s34, s36, 5
    s_add_u32 s38, s38, s34
    s_add_u32 s39, s38, {16*1152}
    v_lshlrev_b32 v3, 6, v20
    v_lshl_add_u32 v3, v21, 3, v3
    v_add_u32 v3, s28, v3
    ''')
    X = lambda j, tt: 128 + (j*2+tt)*2
    S = lambda j, tt: 144 + (j*2+tt)*2
    for tt in range(2):
        for j in range(3): a(f'buffer_load_dwordx2 {vr(X(j,tt),2)}, v2, s[4:7], s{38+tt} offen offset:{32*j}')
    stamp(a, 1)
    a('s_waitcnt vmcnt(30)')
    for tt in range(2):
        for j in range(3): a(f'ds_read_b64_tr_b16 {vr(S(j,tt),2)}, v3 offset:{j*1024+32*tt}')
    a('s_waitcnt vmcnt(0) lgkmcnt(0)')
    stamp(a, 4)
    for tt in range(2):
        for j in range(3):
            f = P(0, j, tt); t = P(1, j, tt); u = P(2, j, tt)
            for p in (0, 2): a(f'v_pk_add_f32 {vr(f+p,2)}, {vr(f+p,2)}, {vr(t+p,2)}\nv_pk_add_f32 {vr(u+p,2)}, {vr(u+p,2)}, {vr(P(3,j,tt)+p,2)}')
            for p in (0, 2): a(f'v_pk_add_f32 {vr(f+p,2)}, {vr(f+p,2)}, {vr(u+p,2)}')
            def rnd(r):
                for p in (0, 2): a(f'v_cvt_pk_bf16_f32 v{r+p}, v{r+p}, v{r+p+1}')
                for p in (0, 2): a(f'v_and_b32 v{r+p+1}, 0xffff0000, v{r+p}\nv_lshlrev_b32 v{r+p}, 16, v{r+p}')
            def unp(d, s_):
                for p in range(2): a(f'v_lshlrev_b32 v{d+2*p}, 16, v{s_+p}\nv_and_b32 v{d+2*p+1}, 0xffff0000, v{s_+p}')
            rnd(f)
            for r in range(4): a(f'v_mul_f32 v{t+r}, {fx(-LOG2E)}, v{f+r}')
            for r in range(4): a(f'v_exp_f32 v{t+r}, v{t+r}')
            for r in range(4): a(f'v_add_f32 v{t+r}, 1.0, v{t+r}')
            for r in range(4): a(f'v_rcp_f32 v{t+r}, v{t+r}')
            unp(u, S(j, tt))
            for r in range(4): a(f'v_mul_f32 v{f+r}, v{f+r}, v{t+r}')
            rnd(f)
            for r in range(4): a(f'v_mul_f32 v{f+r}, v{f+r}, v{u+r}')
            rnd(f)
            unp(u, X(j, tt))
            for r in range(4): a(f'v_add_f32 v{f+r}, v{f+r}, v{u+r}')
            a(f'v_cvt_pk_bf16_f32 v{f}, v{f}, v{f+1}\nv_cvt_pk_bf16_f32 v{f+1}, v{f+2}, v{f+3}')
            a(f'buffer_store_dwordx2 {vr(f,2)}, v2, s[8:11], s{38+tt} offen offset:{32*j}')
    stamp(a, 10)
    stamp_out(a, 3, 76)
    a.label('L_fin_end')
    a('s_endpgm')

def main(argv):
    out = argv[0] if argv else 'v1.s'
    STAMP[0] = '-s' in argv
    build([('kgen_kernel', kgen_kernel, 256, 256), ('gemm1_kernel', gemm1_kernel, 512, 256), ('mid_kernel', mid_kernel, 512, 256), ('fin_kernel', fin_kernel, 256, 256)],
          [('kgen_kernel', 144, 256, 131072), ('gemm1_kernel', 256, 256, 163840), ('mid_kernel', 256, 256, 163840), ('fin_kernel', 256, 256, 12288)], out, verbose='-v' in argv)
```

```python
from gen import *
WS_FLG = 0x3400000
WS_SIZE = 0x4000000
OOB = 0x7ffffff0
ST_ROW = 4352
TOP = 147456
SPIN = 200000
OPT = dict()

def interleave(a, main, extra, start=0, end=None):
    end = len(main) if end is None else end
    n = len(extra); j = 0
    for i, l in enumerate(main):
        while j < n and i >= start and (i-start)*n >= j*(end-start):
            for x in extra[j]: a(x)
            j += 1
        a(l)
    while j < n:
        for x in extra[j]: a(x)
        j += 1

def kgen_v(a):
    PRM = 88
    WA, RA = 104, 232
    W1, W8, W256 = 114, 116, 118
    AP, BP, T0, DD = 120, 176, 192, 176
    DT, HH, T1 = 208, 209, 210
    pts = sorted({a_point(s, h) for s in range(16) for h in range(2)}); idx = {p: i for i, p in enumerate(pts)}
    a(f'''
    s_lshl_b32 s19, s24, 15
    v_and_b32 v{T1}, 1, v0
    v_bfe_u32 v{T1+1}, v0, 2, 1
    v_lshl_or_b32 v{T1}, v{T1+1}, 1, v{T1}
    v_bfe_u32 v{T1+1}, v0, 1, 1
    v_lshl_or_b32 v{T1}, v{T1+1}, 2, v{T1}
    v_lshl_add_u32 v{T1+1}, v0, 7, s19
    ''')
    for u in range(8): a(f'v_xor_b32 v{WA+u}, {u}, v{T1}\nv_lshl_add_u32 v{WA+u}, v{WA+u}, 4, v{T1+1}')
    a(f'''
    v_lshrrev_b32 v{HH}, 5, v0
    v_bfe_u32 v{T1+1}, v0, 2, 2
    v_lshl_add_u32 v{RA}, v{HH}, 3, v{T1+1}
    v_lshl_add_u32 v{RA}, v{RA}, 7, s19
    v_bfe_u32 v{T1+2}, v0, 4, 1
    v_bfe_u32 v{T1+3}, v0, 1, 1
    v_lshl_add_u32 v{T1+2}, v{T1+2}, 1, v{T1+3}
    v_bfe_u32 v{T1+1}, v0, 2, 1
    v_bfe_u32 v{T1+3}, v0, 3, 1
    v_lshl_or_b32 v{T1+1}, v{T1+3}, 2, v{T1+1}
    v_xor_b32 v{T1+2}, v{T1+2}, v{T1+1}
    v_lshl_add_u32 v{RA}, v{T1+2}, 4, v{RA}
    v_and_b32 v{T1+2}, 1, v0
    v_lshl_add_u32 v{RA}, v{T1+2}, 3, v{RA}
    v_xor_b32 v{RA+1}, 32, v{RA}
    v_xor_b32 v{RA+2}, 64, v{RA}
    v_xor_b32 v{RA+3}, 96, v{RA}
    v_min_u32 v{T1}, 53, v0
    v_mul_u32_u24 v{T1+1}, 43, v{T1}
    v_lshrrev_b32 v{T1+1}, 8, v{T1+1}
    v_mul_u32_u24 v{T1+2}, 6, v{T1+1}
    v_sub_u32 v{T1+2}, v{T1}, v{T1+2}
    v_mul_u32_u24 v112, 9216, v{T1+1}
    v_lshl_add_u32 v112, v{T1+2}, 7, v112
    v_lshlrev_b32 v113, 7, v{T1}
    s_lshl_b32 s33, s25, 2
    s_add_u32 s33, s33, s24
    s_mul_i32 s80, s33, {9*9216}
    s_mul_i32 s34, s81, {18*128}
    s_add_u32 s80, s80, s34
    s_mul_i32 s83, s33, {18*1152}
    s_mul_i32 s34, s81, {1152*1152}
    s_add_u32 s83, s83, s34
    s_mov_b32 s16, 0
    s_mov_b32 s17, 16
    s_mov_b32 s18, s61
    s_mov_b32 s3, 0xffff0000
    s_waitcnt vmcnt(18)
    ''')
    stamp(a, 5)
    a.label('L_kg_loop')
    P = PRM
    a(f'''
    v_lshlrev_b32 v{DT}, 16, v{P+4}
    v_and_b32 v{T1}, 0x7fff7fff, v{P+2}
    v_and_b32 v{T1+1}, 0x7fff7fff, v{P+3}
    v_mul_f32 v{DT}, {fx(LOG2E)}, v{DT}
    v_pk_max_u16 v{T1}, v{T1}, v{T1+1}
    v_exp_f32 v{DT}, v{DT}
    v_lshlrev_b32 v{T1+1}, 16, v{T1}
    v_max_u32 v{T1}, v{T1}, v{T1+1}
    v_cvt_pk_bf16_f32 v{DT}, v{DT}, v{DT}
    v_and_b32 v{DT}, s3, v{DT}
    v_max_u32_dpp v{T1}, v{T1}, v{T1} quad_perm:[1,0,3,2] row_mask:0xf bank_mask:0xf
    v_max_u32_dpp v{T1}, v{T1}, v{T1} quad_perm:[2,3,0,1] row_mask:0xf bank_mask:0xf
    v_max_u32_dpp v{T1}, v{T1}, v{T1} row_half_mirror row_mask:0xf bank_mask:0xf
    v_max_u32_dpp v{T1}, v{T1}, v{T1} row_mirror row_mask:0xf bank_mask:0xf
    v_readlane_b32 s33, v{T1}, 0
    v_readlane_b32 s34, v{T1}, 16
    v_readlane_b32 s78, v{T1}, 32
    v_readlane_b32 s79, v{T1}, 48
    s_max_u32 s33, s33, s34
    s_max_u32 s78, s78, s79
    s_max_u32 s33, s33, s78
    s_lshr_b32 s33, s33, 23
    s_max_u32 s33, s33, 40
    s_min_u32 s33, s33, 250
    s_sub_u32 s78, 266, s33
    s_lshl_b32 s78, s78, 23
    s_sub_u32 s79, s33, 25
    s_lshl_b32 s79, s79, 23
    ''')
    a.label('L_kg_half')
    if OPT.get('pf', 1): a('buffer_load_dword v103, v112, s[8:11], s80 offen')
    stamp(a, 12)
    a(f'''
    v_lshlrev_b32 v{T1+2}, s17, v{P}
    v_lshlrev_b32 v{T1+3}, s17, v{P+1}
    v_and_b32 v{T1+2}, s3, v{T1+2}
    v_and_b32 v{T1+3}, s3, v{T1+3}
    v_mul_f32 v{T1+2}, {fx(LOG2E)}, v{T1+2}
    v_mul_f32 v{T1+3}, v{T1+3}, v{DT}
    v_exp_f32 v{T1+2}, v{T1+2}
    v_mul_f32 v{T1+3}, 0.15915494, v{T1+3}
    v_cvt_pk_bf16_f32 v{T1+2}, v{T1+2}, v{T1+2}
    v_and_b32 v{T1+2}, s3, v{T1+2}
    v_mul_f32 v{T1+2}, v{T1+2}, v{DT}
    v_mul_f32 v{T1+2}, {fx(-LOG2E)}, v{T1+2}
    ''')
    for p, w in ((1, W1), (8, W8), (256, W256)):
        if p == 1: a(f'v_exp_f32 v{T1}, v{T1+2}\nv_fract_f32 v{T1+1}, v{T1+3}')
        else: a(f'v_mul_f32 v{T1}, {fx(float(p))}, v{T1+2}\nv_mul_f32 v{T1+1}, {fx(float(p))}, v{T1+3}\nv_exp_f32 v{T1}, v{T1}\nv_fract_f32 v{T1+1}, v{T1+1}')
        a(f'v_cos_f32 v{w}, v{T1+1}\nv_sin_f32 v{w+1}, v{T1+1}\nv_mul_f32 v{w}, v{w}, v{T1}\nv_mul_f32 v{w+1}, v{w+1}, v{T1}')
    c0 = AP + 2*idx[0]
    a(f'v_lshlrev_b32 v{c0}, s17, v{P+2}\nv_lshlrev_b32 v{c0+1}, s17, v{P+3}\nv_and_b32 v{c0}, s3, v{c0}\nv_and_b32 v{c0+1}, s3, v{c0+1}')
    a(f'v_mul_f32 v{c0}, s78, v{c0}\nv_mul_f32 v{c0+1}, s78, v{c0+1}\nv_mov_b32 v{BP}, {fx(16384.0)}\nv_mov_b32 v{BP+1}, 0')
    for p in pts[1:]:
        for l in (cmul(AP+2*idx[p], AP+2*idx[p-1], W1) if p <= 8 else cmul(AP+2*idx[p], AP+2*idx[p-256], W256)): a(l)
    stamp(a, 13)
    if OPT.get('pf', 1): a('buffer_load_dword v103, v112, s[12:15], s80 offen offset:1024\ns_add_u32 s80, s80, 768\ns_cmp_ge_u32 s16, 2\ns_cselect_b32 s80, 0x7ff00000, s80')
    k = 0
    def a_out(u, comp):
        nonlocal k
        ng = '-' if comp else ''; t = T0 + 4*(k % 4); k += 1
        row = [a_point(4*u + (r & 3), r >> 2) for r in range(8)]
        for j in range(4): a(f'v_cvt_pk_f16_f32 v{t+j}, {ng}v{AP+2*idx[row[2*j]]+comp}, {ng}v{AP+2*idx[row[2*j+1]]+comp}')
        a(f'ds_write_b128 v{WA+u}, {vr(t,4)} offset:{comp*8192}')
    pendw = None
    for u in range(4):
        for j in range(8):
            if j == 2 and pendw: a(pendw); pendw = None
            if j in (4, 6): a_out(u, (j-4)//2)
            if u == 0 and j == 0: continue
            for l in cmul(BP+2*j, BP+2*((j-1) % 8), W8): a(l)
        for comp in range(2):
            t = T0 + 4*(k % 4); k += 1
            for j in range(4): a(f'v_cvt_pk_f16_f32 v{t+j}, v{BP+4*j+comp}, v{BP+4*j+2+comp}')
            w = f'ds_write_b128 v{WA+4+u}, {vr(t,4)} offset:{comp*8192}'
            if comp == 0: a(w)
            else: pendw = w
    a(pendw)
    a(f'''
    s_add_u32 s16, s16, 1
    s_xor_b32 s17, s17, 16
    ''')
    for u in range(8): a(f'v_xor_b32 v{WA+u}, 0x4000, v{WA+u}')
    a(f'''
    s_cmp_eq_u32 s16, 5
    s_cbranch_scc1 L_kg_sync
    s_bitcmp1_b32 s16, 0
    s_cbranch_scc1 L_kg_half
    s_branch L_kg_fin
    ''')
    a.label('L_kg_sync')
    a('s_waitcnt lgkmcnt(0)\ns_barrier')
    a.label('L_kg_fin')
    if OPT.get('pf', 1): a('buffer_load_dword v103, v113, s[84:87], s83 offen\ns_add_u32 s83, s83, 6912')
    stamp(a, 6)
    a('s_waitcnt lgkmcnt(0)')
    rds = []
    for kap in range(16):
        r = kap*8
        rds += [f'ds_read_b64_tr_b16 {ar(r,2)}, v{RA} offset:{kap*2048}', f'ds_read_b64_tr_b16 {ar(r+2,2)}, v{RA+1} offset:{kap*2048+512}',
                f'ds_read_b64_tr_b16 {ar(r+4,2)}, v{RA+2} offset:{kap*2048}', f'ds_read_b64_tr_b16 {ar(r+6,2)}, v{RA+3} offset:{kap*2048+512}']
    for l in rds[:12]: a(l)
    for kap in range(16):
        nxt = rds[12+4*kap:16+4*kap]
        a(f's_waitcnt lgkmcnt({min(8, 4*(15-kap))})')
        a(f'v_mfma_f32_32x32x16_f16 {vr(DD,16)}, {ar(kap*8,4)}, {ar(kap*8+4,4)}, {"0" if kap==0 else vr(DD,16)}')
        for l in nxt: a(l)
    stamp(a, 7)
    O1, O2, O3 = T1+1, T1+2, T1+3
    a(f'''
    v_mul_f32 v{DT}, s79, v{DT}
    v_and_b32 v{T1}, 31, v0
    v_lshlrev_b32 v{T1}, 4, v{T1}
    v_sub_u32 v{T1}, {4080-2560}, v{T1}
    v_lshlrev_b32 v{O1}, 3, v{HH}
    v_sub_u32 v{O1}, v{T1}, v{O1}
    v_lshlrev_b32 v{O2}, 9, v{HH}
    v_sub_u32 v{O2}, v{T1}, v{O2}
    v_lshlrev_b32 v{O3}, 10, v{HH}
    v_sub_u32 v{O3}, v{T1}, v{O3}
    v_and_b32 v{T1}, 1, v0
    v_cmp_eq_u32 vcc, 1, v{T1}
    s_add_u32 s19, s18, {KV_V}
    ''')
    for s in range(0, 16, 2): a(f'v_pk_mul_f32 {vr(DD+s,2)}, {vr(DD+s,2)}, {vr(DT,2)} op_sel_hi:[1,0]')
    V = lambda s: DD+s
    a(f'v_cndmask_b32 v{T1+4}, v{V(11)}, v{V(12)}, vcc\nv_cndmask_b32 v{T1+5}, v{V(13)}, v{V(14)}, vcc')
    o = [AP]
    def put(vals, addr, off, so):
        n = len(vals)//2; t = o[0]; o[0] += 4
        for j in range(n): a(f'v_cvt_pk_bf16_f32 v{t+j}, v{vals[2*j]}, v{vals[2*j+1]}')
        a(f'buffer_store_dwordx{n} {vr(t,n)}, v{addr}, s[20:23], s{so} offen offset:{off+2560}')
    put([V(3), V(2), V(1), V(0)], O1, 8, 18); put([V(4), V(3), V(2), V(1)], O1, 8, 19)
    put([V(7), V(6), V(5), V(5)], O1, 8-512, 18); put([V(7), V(7), V(6), V(5)], O1, 8-512, 19)
    Q0, Q1, Q2 = V(8), V(9), V(10)
    put([Q2, Q2, Q1, Q1, Q1, Q0, Q0, Q0], O2, -1024, 18); put([Q2, Q2, Q2, Q1, Q1, Q1, Q0, Q0], O2, -1024, 19)
    for b in range(2):
        R0, R1, M = V(11+2*b), V(12+2*b), T1+4+b
        put([R1, R1, R1, M, R0, R0, R0, R0], O3, -2048-512*b, 18); put([R1, R1, R1, R1, M, R0, R0, R0], O3, -2048-512*b, 19)
    a(f'''
    v_mov_b32 v{T1}, 0
    v_cmp_eq_u32 vcc, 0, v0
    v_cvt_pk_bf16_f32 v{O1}, v{V(0)}, v{T1}
    v_and_b32 v{O2}, 15, v0
    v_lshlrev_b32 v{O2}, 2, v{O2}
    v_cndmask_b32 v{O1}, v{T1}, v{O1}, vcc
    v_cmp_gt_u32 vcc, 16, v0
    v_add_u32 v{O2}, 4096, v{O2}
    v_add_u32 v{O3}, {KV_V}, v{O2}
    v_cndmask_b32 v{O2}, v{O2}, v{O3}, vcc
    buffer_store_dword v{O1}, v{O2}, s[20:23], s18 offen
    s_cmp_eq_u32 s16, 5
    s_cbranch_scc1 L_kg_done
    ''')
    for i in range(5): a(f'v_mov_b32 v{P+i}, v{P+5+i}\nv_mov_b32 v{P+5+i}, v{P+10+i}')
    a(f'''
    s_waitcnt vmcnt({16 if OPT.get('pf', 1) else 11})
    buffer_atomic_add v217, v216, s[92:95], 0 offen
    s_mov_b32 s94, 0
    s_cmp_eq_u32 s16, 2
    s_cselect_b32 s18, s62, s60
    s_cbranch_scc1 L_kg_loop
    s_and_b32 s33, s24, 1
    s_lshl_b32 s17, s33, 4
    s_xor_b32 s17, s17, 16
    s_lshl_b32 s34, s33, 14
    s_lshl_b32 s33, s33, 15
    ''')
    for u in range(8): a(f'v_subrev_u32 v{WA+u}, s34, v{WA+u}')
    for u in range(4): a(f'v_subrev_u32 v{RA+u}, s33, v{RA+u}')
    a('s_barrier\ns_branch L_kg_loop')
    a.label('L_kg_done')
    a('s_barrier')

LA1 = 13
FO = [(0, 0), (1, 0), (0, 1), (1, 1)]
def g1_dma(k):
    return (f's_add_u32 m0, s28, {k*8192}', f'buffer_load_dwordx4 v1, s[8:11], s{40+k} offen lds ; tag=w{k}',
            f'buffer_load_dwordx4 v1, s[12:15], s{40+k} offen offset:1024 lds ; tag=w{k}')
def g1_rd(k, i, half):
    mat, j = FO[i]; off = k*8192 + mat*1024 + half*512
    dst = AF + ((k & 1)*4 + i)*4 + 2*half
    return f'ds_read_b64_tr_b16 {vr(dst,2)}, v{2 + 2*(off >> 16) + j} offset:{off & 0xffff} ; tag=a{k}_{i}'
acc = lambda i, tt: ACC + (i*4+tt)*4
pend = lambda i, tt: PEND + (i*4+tt)*4
h_store = lambda tt, ho: f'buffer_store_dwordx4 {vr(ho,4)}, v8, s[16:19], s{30 if tt==0 else 77+tt} offen sc1'
VSIG, VONE, VPOLL, VLVL, VPOFF, VTHR, VTAB, VT = 216, 217, 218, 219, 220, 221, 222, 223
COUNT = f'buffer_atomic_add v{VONE}, v{VSIG}, s[92:95], 0 offen'
SIGNAL = f'buffer_store_dword v{VLVL}, v{VSIG}, s[20:23], s36 offen sc1'
LVLUP = f'v_add_u32 v{VLVL}, 1, v{VLVL}'
def poll_ld(tag): return f'buffer_load_dword v{VPOLL}, v{VPOFF}, s[4:7], 0 offen sc1 ; tag={tag}'
XF_LD = 'buffer_load_dwordx3 v[12:14], v15, s[20:23], s31 offen sc1'
FREE_G = [3, 7, 10, 11, 15, 0]

def spin(a, name, back, load, reg, thr, post=''):
    a.label(name)
    a(f's_mov_b32 s100, {SPIN}')
    a.label(name + '_l')
    a(f'''
    {load}
    s_waitcnt vmcnt(0)
    {post}
    v_cmp_gt_u32 vcc, {thr}, v{reg}
    s_sub_u32 s100, s100, 1
    s_cbranch_scc1 {back}
    s_cbranch_vccz {back}
    s_sleep 1
    s_branch {name}_l
    ''')

def g1_block(kind, last_wait=None):
    ms = []
    for k in range(18):
        for i in range(4):
            for tt in range(4):
                d = pend(i, tt) if k == 17 else acc(i, tt)
                ms.append(f'v_mfma_f32_16x16x32_bf16 {vr(d,4)}, {vr(AF+((k&1)*4+i)*4,4)}, {xfrag(k,tt)}, {"0" if k==0 else vr(acc(i,tt),4)}')
    g = Gaps(ms); last = kind == 'last'
    for k in range(18):
        b = k*16; kn = (k+1) % 18
        if k % 3 == 2:
            g.scalar(b, f'@vm w{(k+3) % 18}' if not (last and k == 17) else last_wait, strict=True); g.scalar(b+1, 's_barrier', strict=True)
        rp = [1, 2, 4, 5, 8, 9, 12, 13]
        if not (last and k == 17):
            for i in range(4):
                for h in range(2): g.vec(b+rp[2*i+h], g1_rd(kn, i, h))
        for i in range(4):
            nk, ni = (k, i+1) if i < 3 else (kn, 0)
            if not (last and k == 17 and i == 3): g.scalar(b+4*i+3, f'@lg a{nk}_{ni}', strict=True)
        if not (last and k+LA1 >= 18):
            m0, d0, d1 = g1_dma((k+LA1) % 18)
            g.scalar(b+5, m0, strict=True); g.vec(b+6, d0, 3); g.vec(b+14, d1, 3)
        if k == 18-LA1 and not last: g.vec(b+2, 'v_add_u32 v1, 0x80, v1')
        if k == 11 and kind != 'first': g.vec(b+2, LVLUP); g.vec(b+3, SIGNAL, 3)
    if kind != 'first':
        g.scalar(0, 's_add_u32 s30, s30, 2048', strict=True)
        for tt in range(1, 4): g.scalar(23+tt, f's_add_u32 s{77+tt}, s30, {tt*147456}')
    return g

def g1_geglu(g, name):
    ch = geglu_chains(pend, 2, h_store, dl=lambda i, tt: 17*16 + i*4 + tt - 1, early=lambda i, tt: max(0, i*4+tt-12))
    endg = g.fill(ch, width=5)
    print(name, 'geglu ends at gap', endg)

def last_block(a, role, prev, prefetch, last_wait, extra=None):
    g = g1_block('last', last_wait)
    pos = [3, 6, 10, 14, 15]
    for k, items in prefetch.items():
        b = k*16; ps = pos if k != 11 else [6, 7, 10, 14, 15]
        for n, (sc, vm) in enumerate(items):
            gp = b + ps[n]
            for x in sc:
                if x.startswith('v_'): g.vec(gp-2, x)
                else: g.scalar(gp-1, x, back=True)
            g.vec(gp, vm, 3 if vm.startswith('buffer') else 1)
    g.scalar(1, '@vm poll', strict=True)
    g.vec(1, f'v_cmp_gt_u32 vcc, v{VT}, v{VPOLL}'); g.scalar(2, f's_cbranch_vccnz L_{role}_sp0', strict=True); g.s[2].append(f'L_{role}_bk0:')
    if role == 'g':
        for gi, t in [(4, 's_lshl_b32 s33, s26, 7'), (6, f's_add_u32 s33, s33, {WS_FLG}'), (8, 's_add_u32 s4, s76, s33'), (9, 's_addc_u32 s5, s77, 0'), (10, 's_mov_b32 s6, 16')]:
            g.scalar(gi, t, strict=True)
        g.vec(8, f'v_lshrrev_b32 v{VPOFF}, 3, v{VPOFF}')
        g.vec(11, poll_ld('pf'), 3)
        b = 4*16
        g.vec(b+8, f'v_and_b32 v{VT}, 15, v{VTHR}'); g.vec(b+9, f'v_lshrrev_b32 v{VTHR}, 4, v{VTHR}')
        g.scalar(b+12, '@vm pf', strict=True)
        g.vec(b+12, f'v_cmp_gt_u32 vcc, v{VT}, v{VPOLL}'); g.scalar(b+14, 's_cbranch_vccnz L_g_sp1', strict=True); g.s[b+14].append('L_g_bk1:')
    else:
        g.scalar(4, f's_mov_b32 s31, {WS_FLG}', strict=True); g.vec(8, 'v_lshlrev_b32 v15, 7, v0')
        g.vec(11, XF_LD + ' ; tag=pf', 3)
        b = 4*16
        g.scalar(b+12, '@vm pf', strict=True)
        g.vec(b+12, 'v_min3_u32 v12, v12, v13, v14'); g.vec(b+13, 'v_cmp_gt_u32 vcc, 1, v12')
        g.scalar(b+15, 's_cbranch_vccnz L_v_sp1', strict=True); g.s[b+15].append('L_v_bk1:')
    if extra: extra(g)
    try:
        import copy
        g2 = copy.deepcopy(g); g1_geglu(g2, role + ' last'); g = g2
    except RuntimeError:
        for n in range(1, 40):
            g2 = copy.deepcopy(g)
            cand = [i for i in range(272) if g2.used[i] == 1]
            for i in cand[::max(1, len(cand)//(4*n))]: g2.used[i] -= 1
            try: g1_geglu(g2, role + f' last (overfill {n})'); g = g2; break
            except RuntimeError: continue
    body = Asm(); g.emit(body)
    for l in resolve_waits(body.lines, prev=prev): a(l)
    return body.lines

def tail_geglu(a):
    a(f's_add_u32 s30, s30, 2048\ns_mov_b32 s33, s32\nv_mov_b32 v10, v9')
    for tt in range(1, 4): a(f's_add_u32 s{77+tt}, s30, {tt*147456}')
    for tt in range(4):
        ho = HO + 4*(tt & 1)
        P = [(pend(2*j, tt)+p, pend(2*j+1, tt)+p, TMP+4*j+p) for j in range(2) for p in (0, 2)]
        for g, u, t in P: a(f'v_pk_mul_f32 {vr(t,2)}, {vr(g,2)}, {vr(g,2)}')
        for g, u, t in P: a(f'v_pk_mul_f32 {vr(u,2)}, {vr(g,2)}, {vr(u,2)}')
        for g, u, t in P: a(f'v_pk_fma_f32 {vr(t,2)}, {vr(t,2)}, s[32:33], v[10:11] op_sel_hi:[1,1,0]')
        for g, u, t in P: a(f'v_pk_mul_f32 {vr(g,2)}, {vr(g,2)}, {vr(t,2)}')
        for g, u, t in P: a(f'v_exp_f32 v{g}, v{g}\nv_exp_f32 v{g+1}, v{g+1}')
        for g, u, t in P: a(f'v_pk_add_f32 {vr(g,2)}, {vr(g,2)}, 1.0 op_sel_hi:[1,0]')
        for g, u, t in P: a(f'v_rcp_f32 v{g}, v{g}\nv_rcp_f32 v{g+1}, v{g+1}')
        for g, u, t in P: a(f'v_pk_mul_f32 {vr(u,2)}, {vr(u,2)}, {vr(g,2)}')
        for n, (g, u, t) in enumerate(P): a(f'v_cvt_pk_bf16_f32 v{ho+n}, v{u}, v{u+1}')
        a(h_store(tt, ho))

G2ACC, G2AF, NF, PF = 48, 144, 8, 6
g2acc = lambda ct, tt: G2ACC + (ct*2+tt)*4
LA2 = 8
def g2_loads(k):
    r = (k % 12)*8
    return [f'buffer_load_dwordx4 {ar(r,4)}, v239, s[16:19], s60 offen sc1 ; tag=h{k%12}', f'buffer_load_dwordx4 {ar(r+4,4)}, v240, s[16:19], s60 offen sc1 ; tag=h{k%12}',
            f'buffer_load_dwordx4 v236, s[84:87], s61 offen lds ; tag=d{k%12}', f'buffer_load_dwordx4 v237, s[84:87], s61 offen offset:1024 lds ; tag=d{k%12}',
            f'buffer_load_dwordx4 v238, s[84:87], s61 offen offset:2048 lds ; tag=d{k%12}']
g2_m0 = lambda k: f's_add_u32 m0, s63, {(k%12)*12288}'

def korder_table():
    grp = [[10*p + q for p in range(3) for q in range(4)], [10*p + 4 + q for p in range(3) for q in range(2)], list(range(30, 36)),
           [10*p + 6 + q for p in range(3) for q in range(4)]]
    out = []
    for r in range(16):
        t = []
        for gl in grp: t += [gl[(i + r) % len(gl)] for i in range(len(gl))]
        assert sorted(t) == list(range(36))
        out += t + [0]*28
    return out

def g_setup(a):
    srd(a, 84, 84, D*F*2+2048, -2048)
    a(f'''
    s_getpc_b64 s[72:73]
    ''')
    a.label('L_pc')
    a(f'''
    s_add_u32 s72, s72, korder_tab-L_pc
    s_addc_u32 s73, s73, 0
    s_and_b32 s33, s25, 7
    s_lshl_b32 s34, s82, 2
    s_add_u32 s33, s33, s34
    s_lshl_b32 s33, s33, 6
    v_add_u32 v160, s33, v0
    global_load_ubyte v{VTAB}, v160, s[72:73]
    s_lshl_b32 s33, s24, 3
    v_add_u32 v236, s33, v10
    v_mul_u32_u24 v236, 1152, v236
    v_and_b32 v160, 6, v10
    v_xor_b32 v160, v160, v11
    v_lshl_add_u32 v236, v160, 4, v236
    s_mul_i32 s33, s82, 384
    s_mul_i32 s34, s81, {36*32*1152}
    s_add_u32 s33, s33, s34
    s_add_u32 s33, s33, 2048
    v_add_u32 v236, s33, v236
    v_add_u32 v237, {(128-1024) & 0xffffffff}, v236
    v_add_u32 v238, {(256-2048) & 0xffffffff}, v236
    s_lshl_b32 s33, s25, 3
    s_lshl_b32 s34, s24, 1
    s_add_u32 s83, s33, s34            ; first token tile of this wave
    s_mul_i32 s33, s83, {144*1024}
    s_mul_i32 s34, s81, {36*1024}
    s_add_u32 s33, s33, s34
    v_lshl_add_u32 v239, v0, 4, s33
    v_add_u32 v240, {144*1024}, v239
    v_lshrrev_b32 v160, 5, v0
    v_bfe_u32 v161, v0, 2, 3
    v_and_b32 v162, 3, v0
    v_mul_u32_u24 v241, 3072, v160
    v_lshl_add_u32 v241, v161, 7, v241
    v_lshl_add_u32 v241, v162, 3, v241
    v_lshrrev_b32 v161, 1, v161
    v_lshl_add_u32 v241, v161, 5, v241
    v_xor_b32 v242, 32, v241
    v_xor_b32 v243, 64, v241
    v_xor_b32 v244, 96, v241
    s_mul_i32 s63, s24, 3072
    v_mov_b32 v{VTHR}, 0
    s_mov_b32 s33, 0x5443
    v_writelane_b32 v{VTHR}, s33, 0
    v_writelane_b32 v{VTHR}, s33, 1
    v_writelane_b32 v{VTHR}, s33, 2
    s_mov_b32 s33, 0x3300
    v_writelane_b32 v{VTHR}, s33, 3
    s_mov_b32 s35, 3
    ''')
    for w in (1, 2):
        for j in range(4): a(f'v_add_u32 v{241+4*w+j}, {w << 16}, v{241+j}')

def g_role(a, prev):
    pf = {}
    for n, k in enumerate([5, 6, 8, 9, 11, 12, 14, 15]):
        ld = g2_loads(n)
        pf[k] = [([f'v_readlane_b32 s62, v{VTAB}, {n}', 's_lshl_b32 s60, s62, 10'], ld[0]), ([f's_mul_i32 s61, s62, {32*1152}'], ld[1]), ([g2_m0(n)], ld[2]), ([], ld[3]), ([], ld[4])]
    hl = last_block(a, 'g', prev, pf, '@vm d1')
    stamp(a, 9)
    def rd(n, half):
        n %= 144; k, ct = divmod(n, 12)
        off = k*12288 + (ct >> 2)*1024 + half*6144
        return f'ds_read_b64_tr_b16 {vr(G2AF+(n%NF)*4+2*half,2)}, v{241+4*(off>>16)+(ct&3)} offset:{off&0xffff} ; tag=a{n}'
    a(f's_mov_b32 s29, 0\ns_mov_b32 s64, {LA2}\nv_readlane_b32 s62, v{VTAB}, {LA2}')
    for n in range(PF):
        for h in range(2): a(rd(n, h))
    tail_geglu(a)
    a('s_waitcnt lgkmcnt(0)')
    stamp(a, 10)
    ms = []
    for k in range(12):
        for ct in range(12):
            for tt in range(2):
                ms.append(f'v_mfma_f32_16x16x32_bf16 {vr(g2acc(ct,tt),4)}, {vr(G2AF+((k*12+ct)%NF)*4,4)}, {ar(k*8+tt*4,4)}, {vr(g2acc(ct,tt),4)}')
    g = Gaps(ms)
    vmg = [5, 9, 13, 17, 21]
    for k in range(12):
        b = k*24
        extra = {0: 1, 6: 1, 5: 15}.get(k)
        for gi, l in zip(vmg, g2_loads(k+LA2)): g.vec(b+gi, l, 3)
        if k in (0, 6): g.vec(b+1, poll_ld(f'p{k}'), 3)
        if k == 5: g.vec(b+11, LVLUP); g.vec(b+15, SIGNAL, 3)
        g.scalar(b+0, 's_lshl_b32 s60, s62, 10', strict=True); g.scalar(b+6, f's_mul_i32 s61, s62, {32*1152}', strict=True)
        g.scalar(b+8, g2_m0(k+LA2), strict=True)
        g.scalar(b+14, 's_add_u32 s64, s64, 1', strict=True)
        for ct in range(12):
            n = k*12+ct
            g0, g1 = b+2*ct, b+2*ct+1
            if (g1-b) in vmg or (g1-b) == extra: g1 = g0
            g.vec(g0, rd(n+PF, 0)); g.vec(g1, rd(n+PF, 1))
            g.scalar(b+2*ct+1, f'@lg a{(n+1)%144}', strict=True)
        g.vec(b+19, f'v_readlane_b32 s62, v{VTAB}, s64')
        if k % 2 == 1:
            gb = b + 2*(12-PF)
            g.scalar(gb-2, f'@vm d{(k+2)%12}' if k != 5 else '@vm h8', strict=True); g.scalar(gb, 's_barrier', strict=True)
        if k in (3, 9):
            g.vec(b+18, f'v_and_b32 v{VT}, 15, v{VTHR}'); g.vec(b+22, f'v_lshrrev_b32 v{VTHR}, 4, v{VTHR}')
        if k in (4, 10):
            g.scalar(b+2, f'@vm p{k-4}', strict=True)
            g.vec(b+2, f'v_cmp_gt_u32 vcc, v{VT}, v{VPOLL}')
            g.scalar(b+4, f's_cbranch_vccnz L_g_sp{k}', strict=True); g.s[b+4].append(f'L_g_bk{k}:')
    b = (12-LA2)*24
    g.scalar(b-24+2, 's_add_u32 s29, s29, 1', strict=True); g.scalar(b-24+16, 's_cmp_eq_u32 s29, 3', strict=True)
    g.scalar(b-24+18, 's_cselect_b32 s18, 0, s18', strict=True); g.scalar(b-24+22, 's_cselect_b32 s86, 0, s86', strict=True)
    g.scalar(286, 's_cmp_eq_u32 s29, 3', strict=True)
    body = Asm(); g.emit(body)
    bl = resolve_waits(body.lines)
    cut = [i for i, l in enumerate(bl) if l.startswith('v_mfma')][24]
    for l in bl[:cut]:
        a(re.sub(r', v\[\d+:\d+\]$', ', 0', l) if l.startswith('v_mfma') else l)
    a.label('L_g2_loop')
    if STAMP[0]: a('s_memtime s[96:97]\ns_memrealtime s[98:99]\ns_add_u32 s101, s29, 11\ns_waitcnt lgkmcnt(0)\ns_mov_b32 s97, m0\ns_mov_b32 m0, s101\nv_writelane_b32 v254, s96, m0\nv_writelane_b32 v255, s98, m0\ns_mov_b32 m0, s97')
    for l in bl[cut:]: a(l)
    a('s_cbranch_scc1 L_g2_done')
    for l in bl[:cut]: a(l)
    a('s_branch L_g2_loop')
    a.label('L_g2_done')
    stamp(a, 14)
    a(f'''
    s_lshl_b32 s33, s25, 4
    s_add_u32 s33, s33, s82
    s_lshl_b32 s33, s33, 2
    s_add_u32 s33, s33, s24            ; (m*16 + c)*4 + w
    s_mul_i32 s64, s33, 12288
    s_add_u32 s64, s64, {WS_PART}      ; + dest s * 16*12288
    s_mul_i32 s34, s81, 3072
    s_add_u32 s65, s64, s34
    s_mul_i32 s34, s81, {16*12288}
    s_add_u32 s66, s64, s34
    s_lshl_b32 s33, s33, 7
    s_add_u32 s67, s33, {WS_FLG+0x20000}
    v_lshlrev_b32 v4, 4, v0
    ''')
    OWN = 16
    for p in range(4):
        a(f's_cmp_eq_u32 s81, {p}\ns_cbranch_scc1 L_x_own{p}')
        a(f's_add_u32 s34, s65, {p*16*12288}')
        for j in range(3):
            r = g2acc(3*p+j, 0)
            for q in range(4): a(f'v_cvt_pk_bf16_f32 v{r+q}, v{r+2*q}, v{r+2*q+1}')
            a(f'buffer_store_dwordx4 {vr(r,4)}, v4, s[20:23], s34 offen offset:{j*1024} sc1')
        a(f's_branch L_x_nxt{p}')
        a.label(f'L_x_own{p}')
        for q in range(0, 24, 2): a(f'v_pk_mul_f32 {vr(OWN+q,2)}, {vr(g2acc(3*p,0)+q,2)}, 1.0 op_sel_hi:[1,0]')
        a.label(f'L_x_nxt{p}')
    srd(a, 4, 70, L*D*2)
    a(f'''
    s_mul_i32 s36, s82, 12
    s_mul_i32 s33, s81, 3
    s_add_u32 s36, s36, s33            ; first column tile
    s_mul_i32 s33, s36, {16*7282}
    s_lshr_b32 s34, s33, 16            ; first conv workgroup
    s_add_u32 s33, s33, {47*7282}
    s_lshr_b32 s33, s33, 16            ; last conv workgroup
    v_add_u32 v5, s34, v0
    v_min_u32 v5, s33, v5
    v_lshlrev_b32 v5, 7, v5
    s_mov_b32 s68, {WS_FLG+0x10000}
    buffer_load_dword v6, v5, s[20:23], s68 offen sc1
    v_and_b32 v12, 15, v0
    v_lshrrev_b32 v13, 4, v0
    v_mul_u32_u24 v2, 1152, v12
    v_lshl_add_u32 v2, v13, 3, v2
    s_mul_i32 s38, s83, {16*1152}
    s_lshl_b32 s34, s36, 5
    s_add_u32 s38, s38, s34
    s_add_u32 s39, s38, {16*1152}
    ''')
    X = lambda j, tt: 144 + (j*2+tt)*2
    S = lambda j, tt: 160 + (j*2+tt)*2
    for tt in range(2):
        for j in range(3): a(f'buffer_load_dwordx2 {vr(X(j,tt),2)}, v2, s[4:7], s{38+tt} offen offset:{32*j}')
    a(f'''
    v_lshrrev_b32 v12, 2, v0
    v_and_b32 v13, 3, v0
    v_mul_u32_u24 v1, {ST_ROW}, v12
    v_lshl_add_u32 v1, v13, 4, v1
    s_mul_i32 s37, s36, {16*ST_ROW}
    s_lshl_b32 s34, s83, 5
    s_add_u32 s37, s37, s34
    s_add_u32 s37, s37, {WS_ST}
    s_add_u32 s28, s63, 147456
    v_lshlrev_b32 v3, 6, v12
    v_lshl_add_u32 v3, v13, 3, v3
    v_add_u32 v3, s28, v3
    v_min_u32 v7, 2, v0
    v_add3_u32 v7, v7, s81, 1
    v_and_b32 v7, 3, v7
    v_lshlrev_b32 v7, 11, v7           ; PF of the other k-splits
    s_lshl_b32 s34, s81, 11
    v_mov_b32 v9, s34
    v_mov_b32 v10, {OOB}
    v_cmp_eq_u32 vcc, 0, v0
    s_load_dwordx2 s[72:73], s[0:1], 88
    v_cndmask_b32 v9, v10, v9, vcc
    s_waitcnt vmcnt(0)
    buffer_store_dword v{VONE}, v9, s[20:23], s67 offen sc1
    buffer_load_dword v8, v7, s[20:23], s67 offen sc1
    v_cmp_gt_u32 vcc, 1, v6
    s_cbranch_vccnz L_g_sps
    ''')
    a.label('L_g_bks')
    for j in range(3):
        a(f's_add_u32 m0, s28, {j*1024}\ns_add_u32 s34, s37, {j*16*ST_ROW}\nbuffer_load_dwordx4 v1, s[20:23], s34 offen sc1 lds')
    a('s_waitcnt vmcnt(3) lgkmcnt(0)\nv_cmp_gt_u32 vcc, 1, v8')
    srd(a, 8, 72, L*D*2)
    a('s_cbranch_vccnz L_g_spp')
    a.label('L_g_bkp')
    stamp(a, 7)
    P = lambda i, j: 48 + (i*3+j)*4
    for i in range(3):
        a(f's_add_u32 s33, s81, {i+1}\ns_and_b32 s33, s33, 3\ns_mul_i32 s33, s33, 3072\ns_add_u32 s34, s66, s33')
        for j in range(3): a(f'buffer_load_dwordx4 {vr(P(i,j),4)}, v4, s[20:23], s34 offen offset:{j*1024} sc1')
    a('s_waitcnt vmcnt(9)')
    for tt in range(2):
        for j in range(3): a(f'ds_read_b64_tr_b16 {vr(S(j,tt),2)}, v3 offset:{j*1024+32*tt}')
    a('s_mov_b32 s3, 0xffff0000')
    T = 96
    for i in range(3):
        a(f's_waitcnt vmcnt({6-3*i})')
        for j in range(3):
            for q in range(4): a(f'v_lshlrev_b32 v{T+2*q}, 16, v{P(i,j)+q}\nv_and_b32 v{T+2*q+1}, s3, v{P(i,j)+q}')
            for q in range(4): a(f'v_pk_add_f32 {vr(OWN+8*j+2*q,2)}, {vr(OWN+8*j+2*q,2)}, {vr(T+2*q,2)}')
    a('s_waitcnt lgkmcnt(0)')
    for j in range(3):
        for tt in range(2):
            f = OWN + 8*j + 4*tt; t = T; u = T+4; x = T+8
            for r in range(4): a(f'v_mul_f32 v{t+r}, {fx(-LOG2E)}, v{f+r}')
            for r in range(4): a(f'v_exp_f32 v{t+r}, v{t+r}')
            for p in range(2): a(f'v_lshlrev_b32 v{u+2*p}, 16, v{S(j,tt)+p}\nv_and_b32 v{u+2*p+1}, s3, v{S(j,tt)+p}')
            for p in (0, 2): a(f'v_pk_add_f32 {vr(t+p,2)}, {vr(t+p,2)}, 1.0 op_sel_hi:[1,0]')
            for p in (0, 2): a(f'v_pk_mul_f32 {vr(f+p,2)}, {vr(f+p,2)}, {vr(u+p,2)}')
            for r in range(4): a(f'v_rcp_f32 v{t+r}, v{t+r}')
            for p in range(2): a(f'v_lshlrev_b32 v{x+2*p}, 16, v{X(j,tt)+p}\nv_and_b32 v{x+2*p+1}, s3, v{X(j,tt)+p}')
            for p in (0, 2): a(f'v_pk_fma_f32 {vr(f+p,2)}, {vr(f+p,2)}, {vr(t+p,2)}, {vr(x+p,2)}')
            a(f'v_cvt_pk_bf16_f32 v{f}, v{f}, v{f+1}\nv_cvt_pk_bf16_f32 v{f+1}, v{f+2}, v{f+3}')
            a(f'buffer_store_dwordx2 {vr(f,2)}, v2, s[8:11], s{38+tt} offen offset:{32*j}')
    stamp_out(a, 1, 76)
    a('s_endpgm')
    spin(a, 'L_g_sp0', 'L_g_bk0', poll_ld('x').split(';')[0], VPOLL, f'v{VT}')
    for k in (1, 4, 10): spin(a, f'L_g_sp{k}', f'L_g_bk{k}', poll_ld('x').split(';')[0], VPOLL, f'v{VT}')
    spin(a, 'L_g_sps', 'L_g_bks', 'buffer_load_dword v6, v5, s[20:23], s68 offen sc1', 6, '1')
    spin(a, 'L_g_spp', 'L_g_bkp', 'buffer_load_dword v8, v7, s[20:23], s67 offen sc1', 8, '1')

U0, U1, TB, U2, RB, NSL = 0, 4608, 24576, 98304, 116736, 6
def v_setup(a):
    for i in range(3):
        a(f'''
        v_add_u32 v160, {64*i}, v0
        v_mul_u32_u24 v161, 10923, v160
        v_lshrrev_b32 v161, 16, v161
        v_mul_u32_u24 v162, 6, v161
        v_sub_u32 v162, v160, v162
        v_bfe_u32 v163, v161, 1, 2
        v_lshrrev_b32 v164, 3, v161
        v_and_b32 v165, 1, v161
        v_lshl_add_u32 v164, v164, 1, v165
        v_lshlrev_b32 v164, 9, v164
        v_sub_u32 v164, {2*(2016-224) + 2048 - 1024*i}, v164
        v_lshl_add_u32 v164, v162, 4, v164
        v_and_b32 v165, 1, v163
        v_mul_u32_u24 v166, {KV_V}, v165
        v_add_u32 v164, v164, v166
        v_add_u32 v163, v163, v165
        v_lshl_add_u32 v{236+i}, v163, 1, v164
        ''')
    a(f'''
    v_lshlrev_b32 v239, 4, v0
    v_lshrrev_b32 v240, 4, v0
    v_mul_u32_u24 v240, {576*256}, v240
    v_and_b32 v160, 15, v0
    v_lshl_add_u32 v240, v160, 4, v240
    v_lshrrev_b32 v160, 4, v0          ; q
    v_and_b32 v161, 15, v0             ; r / n
    v_and_b32 v162, 3, v0
    v_sub_u32 v162, 3, v162
    v_mul_u32_u24 v241, 192, v162
    v_lshl_add_u32 v241, v160, 4, v241
    v_lshrrev_b32 v162, 2, v161
    v_lshlrev_b32 v162, 3, v162
    v_sub_u32 v241, v241, v162
    s_mul_i32 s33, s24, 3072
    s_add_u32 s33, s33, {TB+24}
    v_add_u32 v241, s33, v241
    v_lshlrev_b32 v162, 5, v161
    v_lshl_add_u32 v163, v160, 4, v162
    s_lshl_b32 s33, s24, 7
    s_sub_u32 s33, {U0+384}, s33
    v_add_u32 v242, s33, v163
    s_mul_i32 s34, s24, 4608
    s_add_u32 s33, s34, {U1}
    v_add_u32 v243, s33, v163
    v_add_u32 v244, {U2-U1}, v243
    v_lshl_add_u32 v245, v160, 3, v162
    s_lshl_b32 s33, s24, 10
    v_add_u32 v246, s33, v245
    s_add_u32 s33, s34, {U1}
    v_add_u32 v247, s33, v245
    v_add_u32 v248, {U2-U1}, v247
    s_lshl_b32 s33, s24, 13
    s_add_u32 s33, s33, {RB}
    v_add_u32 v249, s33, v239
    s_lshl_b32 s33, s24, 11
    s_add_u32 s33, s33, {RB}
    v_add_u32 v250, s33, v239
    v_lshl_add_u32 v251, v0, 3, s34
    v_lshlrev_b32 v252, 3, v0
    ''')

def v_role(a, prev):
    steps = [(0, 0), (0, 1)] + [(1, d) for d in range(8)] + [(2, d) for d in range(8)]
    def tdma(s):
        ci, d = steps[s]; sl = s % NSL; out = []
        for i in range(3):
            sc = [f's_add_u32 m0, s63, {TB+sl*12288}', f's_add_u32 s34, s{60+ci}, {(7-d)*64}'] if i == 0 else []
            out.append((sc, f'buffer_load_dwordx4 v{236+i}, s[20:23], s34 offen offset:{i*1024} lds ; tag=t{s}'))
        return out
    def udma(i, base):
        return [([f's_add_u32 m0, s67, {base+512}'] if j == 0 else [f's_add_u32 s{72+i}, s{72+i}, {4*576*256-1024}'],
                 f'buffer_load_dwordx4 v240, s[20:23], s{72+i} offen offset:{j*1024} sc1 lds ; tag=u{i}') for j in range(4)]
    pf = {5: [([f's_add_u32 m0, s91, {U0+512}'], 'buffer_load_dwordx4 v240, s[20:23], s75 offen sc1 lds ; tag=u0')], 6: udma(1, U1)}
    for n, k in enumerate([8, 9, 11, 12, 14, 15]): pf[k] = tdma(n)
    pf[7] = [(['v_mov_b32 v10, 0', 'v_mov_b32 v11, 0'], f'ds_write_b64 v252, v[10:11] offset:{U0}'), ([], f'ds_write_b64 v251, v[10:11] offset:{U1}')]
    pf[17] = udma(2, U2) + [([f'v_add_u32 v251, {U2}, v251'], 'ds_write_b64 v251, v[10:11]')]
    hl = last_block(a, 'v', prev, pf, '@vm t1')
    stamp(a, 9)
    CA = [32, 64, 96]; E0 = 128
    tf = lambda s, g: ar((s & 1)*64 + g*4, 4)
    uf = lambda s, k: ar((s & 1)*64 + 32 + k*4, 4)
    def reads(s):
        ci, d = steps[s]; sl = s % NSL; out = []; b = (s & 1)*64
        for j in range(8):
            off = sl*12288 + (j >> 1)*768 + (j & 1)*96
            out.append(f'ds_read_b128 {uf(s,j)}, v{242+ci} offset:{512 + 512*j - 64*d - 32 - (384 if ci==0 else 0)}')
            out.append(f'ds_read_b64 {ar(b+j*4,2)}, v241 offset:{off}')
            out.append(f'ds_read_b64 {ar(b+j*4+2,2)}, v241 offset:{off+8}')
        return out
    for l in reads(0): a(l)
    tail_geglu(a)
    a(f'''
    s_add_u32 s33, s91, {U0+512}
    v_add_u32 v12, s33, v239
    s_add_u32 s33, s67, {U1+512}
    v_add_u32 v13, s33, v239
    v_add_u32 v14, {U2-U1}, v13
    s_waitcnt lgkmcnt(0)
    ''')
    stamp(a, 11)
    ms = []
    for s, (ci, d) in enumerate(steps):
        seen = set()
        for g_ in range(8):
            for k in range(8-g_):
                nt = g_+k; c = vr(CA[ci]+nt*4, 4)
                first = d == 0 and nt not in seen; seen.add(nt)
                ms.append(f'v_mfma_f32_16x16x32_bf16 {c}, {tf(s,g_)}, {uf(s,k)}, {"0" if first else c}')
    g = Gaps(ms)
    for s in range(18):
        b = s*36
        if s+1 < 18:
            if s != 3: g.scalar(b, f'@vm t{s+1}', strict=True)
            for i, l in enumerate(reads(s+1)): g.vec(b+i+1, l)
            g.scalar(b+35, 's_waitcnt lgkmcnt(0)', strict=True)
        if s+NSL < 18:
            for i, (sc, vm) in enumerate(tdma(s+NSL)):
                gp = b+27+2*i
                for x in sc: g.scalar(gp-1, x, back=True)
                g.vec(gp, vm, 3)
    def epi(tiles, ci, oreg, start):
        ch = []
        for n, (y, off) in enumerate(tiles):
            u = E0 + 2*n
            for p in range(2):
                t = 160 + 2*((2*n+p) % 8); o = 192 + 2*(n % 4) + p
                ch.append(dict(earliest=start, ops=[(f'v_lshlrev_b32 v{t}, 16, v{u+p}', 1), (f'v_and_b32 v{t+1}, s3, v{u+p}', 1),
                      (f'v_fmac_f32 v{y+2*p}, s{64+ci}, v{t}', 1), (f'v_fmac_f32 v{y+2*p+1}, s{64+ci}, v{t+1}', 1), (f'v_cvt_pk_bf16_f32 v{o}, v{y+2*p}, v{y+2*p+1}', 1)]))
            ch.append(dict(ops=[(f'ds_write_b64 v{246+ci}, {vr(192+2*(n%4),2)} offset:{512+off}', 1, [len(ch)-2, len(ch)-1])]))
        return ch
    def sread(ci, n): return [f'ds_read_b128 {vr(176+4*i,4)}, v{12+ci} offset:{i*1024}' for i in range(n)]
    def sstore(ci, n): return [f'buffer_store_dwordx4 {vr(176+4*i,4)}, v239, s[20:23], s{88+ci} offen offset:{i*1024} sc1' for i in range(n)]
    def sout(ci, n, e):
        st = e//36 + 1
        for i, l in enumerate(sread(ci, n)): g.vec(st*36+2+2*i, l)
        for i, l in enumerate(sstore(ci, n)): g.vec((st+1+i//2)*36 + (25 if i % 2 == 0 else 33), l, 3)
        return st+1+(n-1)//2
    def ureads(tiles, ci): return [f'ds_read_b64 {vr(E0+2*n,2)}, v{246+ci} offset:{512+off}' for n, (y, off) in enumerate(tiles)]
    g.scalar(36+2, 's_barrier', strict=True)
    b = 2*36
    for n in range(8): g.vec(b+8+2*n, f'ds_write_b128 v249, {vr(CA[0]+4*n,4)} offset:{n*1024}')
    b = 3*36
    g.scalar(b, '@vm t6', strict=True); g.scalar(b+1, 's_barrier', strict=True); g.vec(b+23, LVLUP); g.vec(b+25, SIGNAL, 3)
    i = 0
    for wv in range(4):
        for t in range(2):
            g.vec(b+2+2*i, f'ds_read_b128 {vr(CA[0]+(wv*2+t)*4,4)}, v250 offset:{wv*8192+t*1024}'); i += 1
    tiles = [(CA[0], 0), (CA[0]+4, 512)]
    for i, l in enumerate(ureads(tiles, 0)): g.vec(b+20+2*i, l)
    ch = [dict(earliest=4*36, ops=[(f'v_add_f32 v{CA[0]+r}, v{CA[0]+r}, v{CA[0]+8+r}', 1), (f'v_add_f32 v{CA[0]+16+r}, v{CA[0]+16+r}, v{CA[0]+24+r}', 1),
                                   (f'v_add_f32 v{CA[0]+r}, v{CA[0]+r}, v{CA[0]+16+r}', 1)]) for r in range(8)]
    e = g.fill(ch, start=4*36, width=3)
    e = g.fill(epi(tiles, 0, 246, e), start=e, width=3)
    assert sout(0, 1, e) < 9
    tiles = [(CA[1]+4*n, n*512) for n in range(8)]
    for i, l in enumerate(ureads(tiles, 1)): g.vec(9*36+2+2*i, l)
    e = g.fill(epi(tiles, 1, 245, 10*36+8), start=10*36+8, width=3)
    assert e < 16*36 and sout(1, 4, e) < 18
    tiles = [(CA[2]+4*n, n*512) for n in range(8)]
    for i, l in enumerate(ureads(tiles, 2)): g.vec(16*36+2+2*i, l)
    body = Asm(); g.emit(body)
    for l in resolve_waits(body.lines, prev=hl): a(l)
    stamp(a, 14)
    g = Gaps(['']*400, cap=2); e = g.fill(epi(tiles, 2, 245, 0), width=3); g.m = g.m[:e]; g.emit(a)
    for l in sread(2, 4): a(l)
    for i, l in enumerate(sstore(2, 4)): a(f's_waitcnt lgkmcnt({3-i})'); a(l)
    a(f'''
    s_lshl_b32 s33, s26, 7
    s_add_u32 s33, s33, {WS_FLG+0x10000}
    s_waitcnt vmcnt(0)
    s_barrier
    buffer_store_dword v{VONE}, v{VSIG}, s[20:23], s33 offen sc1
    ''')
    stamp_out(a, 1, 76)
    a('s_endpgm')
    spin(a, 'L_v_sp0', 'L_v_bk0', poll_ld('x').split(';')[0], VPOLL, f'v{VT}')

    spin(a, 'L_v_sp1', 'L_v_bk1', XF_LD, 12, '1', 'v_min3_u32 v12, v12, v13, v14')

def fused_kernel(a):
    a.label(NAME + '_kernel')
    a('s_cmp_ge_u32 s2, 256\ns_cbranch_scc1 L_end')
    stamp(a, 0)
    a('''
    s_load_dwordx2 s[70:71], s[0:1], 0
    s_load_dwordx4 s[72:75], s[0:1], 64
    s_load_dwordx4 s[92:95], s[0:1], 96
    s_load_dwordx2 s[84:85], s[0:1], 80
    s_load_dwordx8 s[8:15], s[0:1], 8
    s_load_dwordx4 s[16:19], s[0:1], 40
    v_lshrrev_b32 v1, 6, v0
    v_and_b32 v0, 63, v0
    v_readfirstlane_b32 s24, v1
    s_and_b32 s3, s2, 7
    s_lshr_b32 s31, s2, 3
    s_and_b32 s25, s3, 1
    s_lshl_b32 s25, s25, 3
    s_lshr_b32 s33, s31, 2
    s_add_u32 s25, s25, s33            ; m
    s_lshr_b32 s81, s3, 1              ; k split
    s_and_b32 s82, s31, 3
    s_lshl_b32 s26, s25, 2
    s_add_u32 s26, s26, s81            ; group
    s_and_b32 s27, s25, 7
    s_lshr_b32 s38, s24, 1             ; fh
    s_and_b32 s39, s24, 1              ; tg
    v_lshrrev_b32 v10, 3, v0
    v_and_b32 v11, 7, v0
    s_lshl_b32 s33, s25, 7
    s_lshl_b32 s34, s39, 6
    s_add_u32 s33, s33, s34
    s_lshl_b32 s34, s38, 3
    s_add_u32 s33, s33, s34
    v_add_u32 v12, s33, v10
    v_mul_u32_u24 v12, 1152, v12
    v_lshl_add_u32 v12, v11, 4, v12
    s_mov_b32 s33, s27
    ''')
    for j in range(9):
        a(f's_lshl_b32 s{41+2*j}, s33, 7')
        if j < 8: a(f's_add_u32 s33, s33, 1\ns_cmp_eq_u32 s33, 9\ns_cselect_b32 s33, 0, s33')
    a(f'v_add_u32 v13, {16*1152}, v12\ns_mov_b32 s6, {L*D*2}\ns_mov_b32 s7, 0x20000\ns_cmp_eq_u32 s82, 3\ns_waitcnt lgkmcnt(0)\ns_mov_b32 s4, s70\ns_mov_b32 s5, s71')
    a('s_cbranch_scc0 L_noprm')
    a(f'''
    s_mul_i32 s33, s26, 9
    s_add_u32 s64, s33, 8
    s_add_u32 s65, s33, s24
    s_add_u32 s66, s65, 4
    ''')
    for n, i in enumerate((1, 2, 0)):
        a(f's_lshl_b32 s33, s{64+i}, 8\nv_lshl_add_u32 v2, v0, 2, s33\ns_lshl_b32 s33, s{64+i}, 1\nv_mov_b32 v3, s33')
        for q in range(4): a(f'global_load_dword v{88+5*n+q}, v2, s[{8+2*q}:{9+2*q}]')
        a(f'global_load_ushort v{88+5*n+4}, v3, s[16:17]')
        a(f's_and_b32 s33, s33, 0xfffc\ns_load_dword s{78+i}, s[18:19], s33')
    a.label('L_noprm')
    raw = lambda rg, j: [52, 16, 88, 124][rg] + j*4
    xld = lambda rg, j: f'buffer_load_dwordx4 {vr(raw(rg,j),4)}, v{12+(rg&1)}, s[4:7], s{41+2*j} offen'
    for rg in range(2):
        for j in range(9): a(xld(rg, j))
    a(f'v_add_u32 v12, {32*1152}, v12\nv_add_u32 v13, {32*1152}, v13\ns_mov_b32 s76, s94\ns_mov_b32 s77, s95\ns_mov_b32 s68, s92\ns_mov_b32 s69, s93')
    for j in range(9): a(f's_mul_i32 s{40+2*j}, s{41+2*j}, {64*9216//128}')
    srd(a, 20, 76, WS_SIZE)
    srd(a, 8, 72, D*F*2); srd(a, 12, 74, D*F*2+1024, -1024)
    a(f'''
    s_lshl_b32 s33, s26, 7
    s_add_u32 s33, s33, {WS_FLG}
    s_lshl_b32 s34, s82, 2
    s_add_u32 s36, s33, s34
    v_mov_b32 v160, {OOB}
    s_add_u32 s34, s33, 0x10000
    s_cmp_eq_u32 s82, 3
    s_cselect_b32 s34, s34, {OOB}
    s_cmp_eq_u32 s24, 0
    s_cselect_b32 s34, s34, {OOB}
    s_cselect_b32 s33, s36, {OOB}
    v_writelane_b32 v160, s33, 0
    v_writelane_b32 v160, s34, 1
    s_lshl_b32 s33, s26, 2
    s_add_u32 s33, s33, s82
    s_lshl_b32 s33, s33, 2
    s_add_u32 s33, s33, s24
    s_lshl_b32 s33, s33, 7
    s_add_u32 s33, s33, {WS_FLG+0x20000}
    v_writelane_b32 v160, s33, 2
    v_mov_b32 v161, 0
    v_mov_b32 v{VLVL}, 0
    buffer_store_dword v161, v160, s[20:23], 0 offen sc1
    v_mov_b32 v{VONE}, 1
    v_mov_b32 v{VSIG}, {OOB}
    s_cmp_eq_u32 s24, 0
    s_cselect_b32 s33, 0, {OOB}
    v_writelane_b32 v{VSIG}, s33, 0
    v_lshlrev_b32 v{VPOFF}, 5, v11
    v_mov_b32 v{VT}, 32
    s_lshl_b32 s33, s3, 5
    s_add_u32 s92, s92, s33
    s_addc_u32 s93, s93, 0
    s_mov_b32 s94, 4
    s_mov_b32 s95, 0x20000
    s_mul_i32 s37, s81, 18
    s_mul_i32 s33, s82, 5
    s_add_u32 s37, s37, s33            ; first 128-byte column line
    s_lshl_b32 s33, s24, 3
    v_add_u32 v1, s33, v10
    v_mul_u32_u24 v1, 9216, v1
    v_bfe_u32 v2, v0, 4, 1
    s_lshl_b32 s33, s39, 1
    v_or_b32 v2, s33, v2
    v_lshlrev_b32 v2, 1, v2
    v_xor_b32 v2, v2, v11
    v_lshl_add_u32 v1, v2, 4, v1
    s_lshl_b32 s33, s37, 7
    v_add_u32 v1, s33, v1
    s_lshl_b32 s28, s24, 11
    v_lshrrev_b32 v160, 4, v0          ; q
    v_bfe_u32 v161, v0, 2, 2           ; rr
    v_and_b32 v162, 3, v0
    v_lshlrev_b32 v2, 11, v160
    v_lshl_add_u32 v2, v161, 7, v2
    v_lshl_add_u32 v2, v162, 3, v2
    v_bfe_u32 v163, v0, 3, 2           ; (q&1)*2 + (rr>>1)
    s_lshl_b32 s33, s38, 1
    v_xor_b32 v163, s33, v163
    v_lshl_add_u32 v2, v163, 5, v2
    v_xor_b32 v3, 32, v2
    v_add_u32 v4, 0x10000, v2
    v_add_u32 v5, 0x10000, v3
    v_add_u32 v6, 0x20000, v2
    v_add_u32 v7, 0x20000, v3
    s_mul_i32 s33, s39, {4*144*1024}
    s_lshl_b32 s34, s38, 10
    s_add_u32 s34, s33, s34
    v_lshl_add_u32 v8, v0, 4, s34
    s_mul_i32 s30, s25, {8*144*1024}
    s_lshl_b32 s33, s37, 11
    s_add_u32 s30, s30, s33
    s_sub_u32 s30, s30, 2048
    s_mov_b32 s32, {fx(GC1)}
    v_mov_b32 v9, {fx(GC0)}
    s_mov_b32 s3, 0xffff0000
    ''')
    XS, XB = 90112, 36864
    WR, RD0, XA, XO_ = 224, 226, 14, 230
    a(f'''
    s_lshl_b32 s33, s38, 2
    v_add_u32 v163, s33, v160
    v_xor_b32 v163, v163, v11
    s_lshl_b32 s33, s39, 11
    s_lshl_b32 s34, s38, 10
    s_add_u32 s34, s34, s33
    s_add_u32 s34, s34, {XS}
    v_lshl_add_u32 v{WR}, v10, 7, s34
    v_lshl_add_u32 v{WR}, v163, 4, v{WR}
    v_add_u32 v{WR+1}, {XB}, v{WR}
    v_and_b32 v164, 15, v0             ; t
    v_lshrrev_b32 v165, 1, v164
    v_xor_b32 v165, v165, v160
    s_add_u32 s33, s33, {XS}
    v_lshl_add_u32 v{RD0}, v164, 7, s33
    v_lshl_add_u32 v{RD0}, v165, 4, v{RD0}
    v_xor_b32 v{RD0+1}, 64, v{RD0}
    v_add_u32 v{RD0+2}, {XB}, v{RD0}
    v_add_u32 v{RD0+3}, {XB}, v{RD0+1}
    s_cmp_eq_u32 s82, 3
    s_cbranch_scc1 L_vset
    s_mul_i32 s59, s81, 9
    s_mul_i32 s34, s82, 3
    s_add_u32 s59, s59, s34
    s_add_u32 s58, s59, s38
    s_add_u32 s59, s59, 2
    v_lshrrev_b32 v165, 2, v0
    v_lshl_add_u32 v166, v165, 7, s33
    v_and_b32 v167, 1, v0
    v_lshl_add_u32 v166, v167, 3, v166
    v_bfe_u32 v167, v0, 1, 1
    v_xor_b32 v165, v10, v167
    ''')
    for i in range(2):
        a(f'''
        s_lshr_b32 s33, s{58+i}, 2
        s_sub_u32 s33, s33, s27
        s_cselect_b32 s34, 9, 0
        s_add_u32 s33, s33, s34
        s_lshl_b32 s33, s33, 12
        s_and_b32 s34, s{58+i}, 3
        s_lshl_b32 s34, s34, 1
        v_xor_b32 v167, s34, v165
        v_lshl_add_u32 v{XA+i}, v167, 4, v166
        v_add_u32 v{XA+i}, s33, v{XA+i}
        s_lshl_b32 s{58+i}, s{58+i}, 12
        ''')
    a(f'''
    s_mul_i32 s33, s25, {576*256}
    s_lshl_b32 s34, s39, 7
    s_add_u32 s33, s33, s34
    s_add_u32 s33, s33, {WS_XNT}
    s_add_u32 s58, s58, s33
    s_add_u32 s59, s59, s33
    s_lshl_b32 s34, s38, 11
    s_add_u32 s59, s59, s34
    v_lshlrev_b32 v{XO_}, 8, v10
    v_lshl_add_u32 v{XO_}, v11, 4, v{XO_}
    ''')
    g_setup(a)
    a('s_branch L_setdone')
    a.label('L_vset')
    a(f'v_mov_b32 v{XO_}, {OOB}\nv_mov_b32 v{XA}, v{RD0}\nv_mov_b32 v{XA+1}, v{RD0}\ns_mov_b32 s58, 0\ns_mov_b32 s59, 0\ns_mov_b32 s35, 1')
    a('s_mul_i32 s63, s24, 3072\ns_mul_i32 s67, s24, 4608\ns_lshl_b32 s91, s24, 10\ns_waitcnt lgkmcnt(0)')
    for i in range(3):
        a(f'''
        s_mul_i32 s{60+i}, s{64+i}, {KV_CH}
        s_add_u32 s{60+i}, s{60+i}, {WS_KV}
        s_lshl_b32 s{72+i}, s{64+i}, 8
        s_add_u32 s{72+i}, s{72+i}, {WS_XNT}
        s_mul_i32 s{88+i}, s{64+i}, {ST_ROW}
        s_add_u32 s{88+i}, s{88+i}, {WS_ST}
        s_and_b32 s33, s{64+i}, 1
        s_lshl_b32 s33, s33, 4
        s_lshr_b32 s{64+i}, s{78+i}, s33
        s_lshl_b32 s{64+i}, s{64+i}, 16
        ''')
    a(f's_mul_i32 s75, s24, {4*576*256}\ns_add_u32 s75, s75, s72\ns_add_u32 s88, s88, s91\ns_mov_b32 s86, {D*F*2}\ns_mov_b32 s87, 0x20000')
    v_setup(a)
    kgen_v(a)
    a('s_lshl_b32 s33, s24, 7\ns_add_u32 s33, s33, 2048\ns_sub_u32 s60, s60, s33\ns_sub_u32 s61, s61, 2048\ns_sub_u32 s62, s62, 2048')
    a.label('L_setdone')
    srd(a, 16, 76, H_BYTES, WS_H)
    a('s_mov_b32 s33, 0x3f803f80')
    stamp(a, 1)
    S, Q = 208, 210
    tq = 0
    xrd = lambda k, rg: f'ds_read_b128 {xfrag(k, rg)}, v{RD0+2*(rg&1)+(k&1)} offset:{(k>>1)*4096} ; tag=x{k}'
    xtr = lambda i, rg: f'ds_read_b64_tr_b16 {vr(80+4*rg+2*i,2)}, v{XA+i} offset:{(rg&1)*XB} ; tag=xt{i}'
    for rg in range(4):
        m = []
        m.append(f's_waitcnt vmcnt({[9, 9, 9, 10][rg]})')
        m += [f'v_mov_b32 v{S}, 0', f'v_mov_b32 v{Q}, 0']
        for j in range(9):
            for r in range(4): m += [f'v_dot2c_f32_bf16 v{S}, s33, v{raw(rg,j)+r}', f'v_dot2c_f32_bf16 v{Q}, v{raw(rg,j)+r}, v{raw(rg,j)+r}']
        if rg > 0:
            t = Asm(); interleave(t, m, [[xtr(i, rg-1)] for i in range(2)] + [[xrd(k, rg-1)] for k in range(18)]); m = t.lines
        n0 = len(m)
        fin = Asm()
        for pat in ('quad_perm:[1,0,3,2]', 'quad_perm:[2,3,0,1]', 'row_half_mirror'):
            fin(f'v_add_f32_dpp v{S}, v{S}, v{S} {pat} row_mask:0xf bank_mask:0xf\nv_add_f32_dpp v{Q}, v{Q}, v{Q} {pat} row_mask:0xf bank_mask:0xf')
        fin(f'''
        v_mul_f32 v{S}, {fx(1.0/D)}, v{S}
        v_mul_f32 v{Q}, {fx(1.0/D)}, v{Q}
        v_fma_f32 v{Q}, -v{S}, v{S}, v{Q}
        v_max_f32 v{Q}, 0, v{Q}
        v_cvt_pk_bf16_f32 v{S}, v{Q}, v{S}
        v_lshlrev_b32 v{Q}, 16, v{S}
        v_and_b32 v{S}, s3, v{S}
        v_add_f32 v{Q}, {fx(1e-5)}, v{Q}
        v_cvt_pk_bf16_f32 v{Q}, v{Q}, v{Q}
        v_and_b32 v{Q}, s3, v{Q}
        v_sqrt_f32 v{Q}, v{Q}
        v_cvt_pk_bf16_f32 v{Q}, v{Q}, v{Q}
        v_and_b32 v{Q}, s3, v{Q}
        v_rcp_f32 v{Q}, v{Q}
        v_mul_f32 v{S}, v{S}, v{Q}
        ''')
        m += fin.lines
        for j in range(9):
            x0 = raw(rg, j); ts = []
            for r in range(4): ts.append(160 + 2*(tq % 8)); tq += 1
            for r in range(4): m += [f'v_lshlrev_b32 v{ts[r]}, 16, v{x0+r}', f'v_and_b32 v{ts[r]+1}, s3, v{x0+r}']
            for r in range(4): m.append(f'v_pk_fma_f32 {vr(ts[r],2)}, {vr(ts[r],2)}, {vr(Q,2)}, {vr(S,2)} op_sel_hi:[1,0,0] neg_lo:[0,0,1] neg_hi:[0,0,1]')
            for r in range(4): m.append(f'v_cvt_pk_bf16_f32 v{x0+r}, v{ts[r]}, v{ts[r]+1}')
            m.append(f'ds_write_b128 v{WR+(rg&1)}, {vr(x0,4)} offset:{j*4096}')
        if rg < 2: extra = [[xld(rg+2, j)] for j in range(9)]
        else:
            extra = []
            if rg == 2: extra.append([f's_add_u32 s{41+2*j}, s{40+2*j}, {32*9216}' for j in range(9)])
            for k in (range(0, 5) if rg == 2 else range(5, 11)):
                m0, d0, d1 = g1_dma(k); extra += [[m0], [d0], [d1]]
        interleave(a, m, extra, start=3, end=len(m)-20)
        a(f's_waitcnt {"vmcnt(16) " if rg == 3 else ""}lgkmcnt(0)\ns_barrier')
    stamp(a, 2)
    pre = Asm()
    for k in range(11):
        for l in g1_dma(k)[1:]: pre(l)
    n0 = len(pre.lines)
    pre(xrd(0, 3))
    for i in range(4):
        for h in range(2): pre(g1_rd(0, i, h))
    pre(xrd(1, 3))
    for k in (11, 12):
        for l in g1_dma(k): pre(l)
    pre('s_waitcnt lgkmcnt(7)')
    for l in pre.lines[n0:]: a(l)
    g = g1_block('first')
    rest = [xtr(0, 3), xtr(1, 3)] + [xrd(k, 3) for k in range(2, 18)]
    slots = [0, 0, 3, 3, 7, 7, 10, 10, 11, 11, 15, 15, 16, 16, 19, 19, 23, 23]
    for gi, l in zip(slots, rest): g.vec(gi, l)
    g.scalar(30, '@lg x17', strict=True)
    su = Asm()
    su(f'''
    s_lshl_b32 s33, s24, 12
    s_add_u32 s33, s33, {TOP}
    s_lshl_b32 s34, s38, 10
    s_add_u32 s34, s34, 2048
    s_mov_b32 s4, s68
    s_mov_b32 s5, s69
    s_mov_b32 s6, 0
    s_mov_b32 s29, 0
    ''')
    gi = 8
    for l in su.lines: gi = g.scalar(gi, l) + 1
    ch = [dict(earliest=26, ops=[(x, 1) for x in ['v_and_b32 v96, 15, v0', 'v_lshl_add_u32 v96, v96, 7, s33', 'v_bfe_u32 v97, v0, 4, 1', 'v_lshl_add_u32 v96, v97, 3, v96',
            'v_lshrrev_b32 v97, 5, v0', 'v_xor_b32 v97, v97, v11', 'v_lshl_add_u32 v96, v97, 4, v96', 'v_xor_b32 v97, 32, v96', 'v_xor_b32 v98, 64, v96', 'v_xor_b32 v99, 96, v96',
            'v_xor_b32 v100, v10, v11', 'v_lshlrev_b32 v100, 4, v100', 'v_lshl_add_u32 v100, v10, 7, v100', 'v_add_u32 v100, s33, v100', 'v_add_u32 v101, s34, v100']])]
    e = g.fill(ch, start=26); assert e <= 48
    wr = [f'ds_write_b64 v{96+rg}, {vr(80+4*rg+2*i,2)} offset:{i*2048}' for rg in range(4) for i in range(2)]
    for gi, l in zip([48, 51, 55, 58, 59, 63, 64, 67], wr): g.vec(gi, l, 2)
    for gi, l in zip([71, 74, 75], ['ds_read_b128 v[104:107], v100', 'ds_read_b128 v[108:111], v100 offset:1024', 'ds_read_b128 v[112:115], v101 ; tag=xo']): g.vec(gi, l)
    g.scalar(86, '@lg xo', strict=True)
    for gi, l in zip([87, 91, 95], [f'buffer_store_dwordx4 v[104:107], v{XO_}, s[20:23], s58 offen sc1', f'buffer_store_dwordx4 v[108:111], v{XO_}, s[20:23], s58 offen offset:2048 sc1',
                                    f'buffer_store_dwordx4 v[112:115], v{XO_}, s[20:23], s59 offen sc1']): g.vec(gi, l, 3)
    g.vec(6*16+3, COUNT, 3)
    first = Asm(); g.emit(first)
    stamp(a, 3)
    for l in resolve_waits(first.lines, prev=pre.lines): a(l)
    g = g1_block('loop')
    g.vec(12*16+10, poll_ld('poll'), 3)
    for gi, t in [(8, 's_add_u32 s29, s29, 1'), (9, 's_cmp_eq_u32 s29, s35'), (10, 's_cselect_b32 s6, 256, 0'), (286, 's_cmp_lt_u32 s29, s35')]:
        g.scalar(gi, t, strict=True)
    g1_geglu(g, 'loop')
    body = Asm(); g.emit(body)
    a.label('L_g1_loop')
    if STAMP[0]: a('s_memtime s[96:97]\ns_memrealtime s[98:99]\ns_add_u32 m0, s29, 4\ns_waitcnt lgkmcnt(0)\nv_writelane_b32 v254, s96, m0\nv_writelane_b32 v255, s98, m0')
    for l in resolve_waits(body.lines): a(l)
    a('s_cbranch_scc1 L_g1_loop')
    stamp(a, 8)
    a('s_cmp_eq_u32 s82, 3\ns_cbranch_scc1 L_vrole')
    g_role(a, body.lines)
    a.label('L_vrole')
    v_role(a, body.lines)
    a.label('L_end')
    a('s_endpgm')

def main(argv):
    out = argv[0]
    STAMP[0] = '-s' in argv
    for x in argv:
        if '=' in x: OPT[x.split('=')[0]] = int(x.split('=')[1])
    hdr = open(f'cdna_kernels/{NAME}.s.ref').read().split('; Override launch')[0]
    a = Asm(); fused_kernel(a)
    a.lines, n = fix_hazards(a.lines, '-v' in argv)
    print('instructions', len(a.lines), 'nops added', n)
    s = hdr + '; @launch grid=(256,1,1) block=(256,1,1) lds=163840\n.amdgcn_target "amdgcn-amd-amdhsa--gfx950"\n.text\n'
    s += f'.globl {NAME}_kernel\n.p2align 8\n.type {NAME}_kernel,@function\n' + a.text()
    t = korder_table()
    s += '.p2align 6\n.type korder_tab,@object\nkorder_tab:\n' + ''.join('.byte ' + ','.join(map(str, t[i:i+64])) + '\n' for i in range(0, len(t), 64)) + f'.size korder_tab, {len(t)}\n'
    s += '.section .rodata,"a"\n.p2align 6\n' + kd(NAME + '_kernel', 512, 256, 102)
    open(out, 'w').write(s)

if __name__ == '__main__':
    main(sys.argv[1:])
```

```python
from gen import *
WS_FLG = 0x3400000
WS_SIZE = 0x4000000
OOB = 0x7ffffff0
ST_ROW = 4352
TOP = 147456
SPIN = 200000
OPT = dict()

def interleave(a, main, extra, start=0, end=None):
    end = len(main) if end is None else end
    n = len(extra); j = 0
    for i, l in enumerate(main):
        while j < n and i >= start and (i-start)*n >= j*(end-start):
            for x in extra[j]: a(x)
            j += 1
        a(l)
    while j < n:
        for x in extra[j]: a(x)
        j += 1

def spin(a, name, back, load, reg, thr, post=''):
    a.label(name)
    a(f's_mov_b32 s100, {SPIN}')
    a.label(name + '_l')
    a(f'''
    {load}
    s_waitcnt vmcnt(0)
    {post}
    v_cmp_gt_u32 vcc, {thr}, v{reg}
    s_sub_u32 s100, s100, 1
    s_cbranch_scc1 {back}
    s_cbranch_vccz {back}
    s_sleep 2
    s_branch {name}_l
    ''')
```

```python
from common5 import *
KG, KH, KC = 2176, 192, 5120
TB, EX, UB, US, RB = 0, 49152, 57344, 18432, 112640

def apoint(sig, hh):
    if sig >= 9: return 512 + 256*hh + 4*(sig-9)
    if hh == 0: return sig
    return 256 + sig if sig % 2 == 0 else 1032 + 256*(sig >> 1)

def v_role(a):
    P, PN = 88, 94
    WA, RA = 104, 100
    W1, W8, W256 = 114, 116, 118
    AP, BP, T0, DD = 120, 176, 192, 176
    DT, HH, T1 = 208, 209, 210
    VSIG, VONE, DUM, VPW, VPD = 216, 217, 218, 219, 220
    O1, O2, O3, O4, MR, MK = 221, 222, 223, 224, 225, 226
    def params(dst):
        a(f's_lshl_b32 s33, s40, 8\nv_lshl_add_u32 v2, v0, 2, s33\ns_lshl_b32 s33, s40, 1\nv_mov_b32 v3, s33')
        for q in range(4): a(f'global_load_dword v{dst+q}, v2, s[{8+2*q}:{9+2*q}]')
        a(f'global_load_ushort v{dst+4}, v3, s[16:17]')
    a(f'''
    s_lshl_b32 s26, s25, 1
    s_lshr_b32 s33, s81, 1
    s_add_u32 s26, s26, s33            ; v
    s_mul_i32 s33, s26, 18
    s_add_u32 s41, s33, s24
    s_lshr_b32 s34, s24, 1
    s_add_u32 s42, s33, s34
    s_add_u32 s42, s42, 16
    s_mov_b32 s40, s41
    ''')
    params(PN)
    for i in range(5):
        a(f's_add_u32 s33, s41, {4*i}' if i < 4 else 's_mov_b32 s33, s42')
        a(f's_lshl_b32 s33, s33, 1\ns_and_b32 s33, s33, 0xfffc\ns_load_dword s{60+i}, s[18:19], s33')
    a('s_mov_b32 s76, s94\ns_mov_b32 s77, s95\ns_and_b32 s39, s24, 1\ns_cmp_eq_u32 s39, 0\ns_cselect_b32 s4, s72, s74\ns_cselect_b32 s5, s73, s75')
    a(f's_mov_b32 s6, {D*F*2}\ns_mov_b32 s7, 0x20000\ns_mov_b32 s86, 0\ns_mov_b32 s87, 0x20000')
    srd(a, 20, 76, WS_SIZE)
    a(f'''
    v_min_u32 v4, 53, v0
    v_mul_u32_u24 v5, 43, v4
    v_lshrrev_b32 v5, 8, v5            ; row
    v_mul_u32_u24 v6, 6, v5
    v_sub_u32 v6, v4, v6
    v_mul_u32_u24 v7, 86, v6
    v_lshrrev_b32 v7, 8, v7
    v_mul_u32_u24 v8, 3, v7
    v_sub_u32 v6, v6, v8
    v_mul_u32_u24 v5, 9216, v5
    v_mul_u32_u24 v7, {18*128}, v7
    v_add_u32 v5, v5, v7
    v_lshl_add_u32 v7, v6, 7, v5
    s_lshl_b32 s33, s26, 2
    s_add_u32 s33, s33, s24
    s_mul_i32 s45, s33, {324*128}
    s_lshr_b32 s33, s33, 1
    s_mul_i32 s43, s33, {9*9216}
    s_add_u32 s33, s43, {36*128}
    ''')
    if OPT.get('pf', 1): a(f'buffer_load_dword v{DUM}, v7, s[4:7], s43 offen offset:{15*128}\nbuffer_load_dword v{DUM}, v7, s[4:7], s33 offen offset:{15*128}')
    a(f'''
    v_mul_u32_u24 v6, 640, v6
    v_add_u32 v{VPW}, v5, v6
    v_lshlrev_b32 v{VPD}, 7, v0
    s_mov_b32 s44, {36*128}
    s_mov_b32 s46, 0
    v_mov_b32 v{VONE}, 1
    v_mov_b32 v{VSIG}, {OOB}
    s_cmp_eq_u32 s24, 0
    s_cselect_b32 s33, 0, {OOB}
    v_writelane_b32 v{VSIG}, s33, 0
    s_lshl_b32 s36, s26, 7
    s_add_u32 s36, s36, {WS_FLG+0x10000}
    v_mov_b32 v4, 0
    buffer_store_dword v4, v{VSIG}, s[20:23], s36 offen sc1
    s_mov_b32 s68, s92
    s_mov_b32 s69, s93
    s_and_b32 s33, s2, 7
    s_lshl_b32 s33, s33, 5
    s_add_u32 s92, s92, s33
    s_addc_u32 s93, s93, 0
    s_mov_b32 s94, 4
    s_mov_b32 s95, 0x20000
    s_mov_b32 s3, 0xffff0000
    ''')
    for r in [9] + list(range(228, 235)): a(f'v_mov_b32 v{r}, {OOB}')
    def prefetch():
        if not OPT.get('pf', 1): return
        a(f'''
        buffer_load_dword v{DUM}, v{VPW}, s[4:7], s43 offen offset:128
        buffer_load_dword v{DUM}, v{VPD}, s[84:87], s45 offen
        s_add_u32 s43, s43, s44
        s_sub_u32 s44, 128, s44
        s_add_u32 s46, s46, 1
        s_cmp_gt_u32 s46, 8
        s_cselect_b32 s33, 8192, 0
        s_add_u32 s45, s45, s33
        s_cmp_ge_u32 s46, 8
        s_cselect_b32 s6, 0, s6
        s_cselect_b32 s86, {D*F*2}, 0
        s_cmp_ge_u32 s46, 13
        s_cselect_b32 s86, 0, s86
        ''')
    NPF = 2 if OPT.get('pf', 1) else 0
    prefetch()
    pts = sorted({apoint(s, h) for s in range(12) for h in range(2)}); idx = {p: i for i, p in enumerate(pts)}
    assert len(pts) == 24
    a(f'''
    s_lshl_b32 s34, s24, 15
    v_and_b32 v{T1}, 1, v0
    v_bfe_u32 v{T1+1}, v0, 2, 1
    v_lshl_or_b32 v{T1}, v{T1+1}, 1, v{T1}
    v_bfe_u32 v{T1+1}, v0, 1, 1
    v_lshl_or_b32 v{T1}, v{T1+1}, 2, v{T1}
    v_lshl_add_u32 v{T1+1}, v0, 7, s34
    ''')
    WU = [0, 1, 2, 4, 5, 6, 7]
    for u in WU: a(f'v_xor_b32 v{WA+u}, {u}, v{T1}\nv_lshl_add_u32 v{WA+u}, v{WA+u}, 4, v{T1+1}')
    a(f'''
    v_lshrrev_b32 v{HH}, 5, v0
    v_bfe_u32 v{T1+1}, v0, 2, 2
    v_lshl_add_u32 v{RA}, v{HH}, 3, v{T1+1}
    v_lshl_add_u32 v{RA}, v{RA}, 7, s34
    v_bfe_u32 v{T1+2}, v0, 4, 1
    v_bfe_u32 v{T1+3}, v0, 1, 1
    v_lshl_add_u32 v{T1+2}, v{T1+2}, 1, v{T1+3}
    v_bfe_u32 v{T1+1}, v0, 2, 1
    v_bfe_u32 v{T1+3}, v0, 3, 1
    v_lshl_or_b32 v{T1+1}, v{T1+3}, 2, v{T1+1}
    v_xor_b32 v{T1+2}, v{T1+2}, v{T1+1}
    v_lshl_add_u32 v{RA}, v{T1+2}, 4, v{RA}
    v_and_b32 v{T1+2}, 1, v0
    v_lshl_add_u32 v{RA}, v{T1+2}, 3, v{RA}
    v_xor_b32 v{RA+1}, 32, v{RA}
    v_xor_b32 v{RA+2}, 64, v{RA}
    v_xor_b32 v{RA+3}, 96, v{RA}
    v_lshlrev_b32 v{O1}, 4, v0
    v_sub_u32 v{O1}, {2096-1024}, v{O1}
    v_mul_u32_u24 v{O2}, {2*KH}, v{T1+2}
    v_and_b32 v{T1}, 30, v0
    v_lshl_add_u32 v{T1}, v{HH}, 6, v{T1}
    v_sub_u32 v{O2}, v{O2}, v{T1}
    v_add_u32 v{O2}, {2*KG + 126 - 32}, v{O2}
    v_and_b32 v{T1}, 15, v0
    v_lshrrev_b32 v{T1+1}, 4, v0
    v_mul_u32_u24 v{O3}, {KH}, v{T1+1}
    v_lshl_add_u32 v{O3}, v{T1}, 2, v{O3}
    v_add_u32 v{O3}, {2*KG+128}, v{O3}
    v_mul_u32_u24 v{O4}, {KG}, v{HH}
    v_and_b32 v{T1+1}, 1, v{T1+1}
    v_mul_u32_u24 v{T1+1}, 2112, v{T1+1}
    v_add_u32 v{O4}, v{O4}, v{T1+1}
    v_lshl_add_u32 v{O4}, v{T1}, 2, v{O4}
    v_mov_b32 v{MR}, 0
    v_mov_b32 v{MK}, 0
    v_writelane_b32 v{MR}, s3, 13
    v_writelane_b32 v{MR}, -1, 14
    v_writelane_b32 v{MR}, -1, 15
    v_writelane_b32 v{MR}, -1, 46
    v_writelane_b32 v{MR}, -1, 47
    s_mov_b32 s33, 0xffff
    v_writelane_b32 v{MK}, s33, 48
    s_mov_b32 s47, 0
    s_mov_b32 s48, 16
    s_mov_b64 s[50:51], 0
    s_mov_b32 s51, -1
    s_waitcnt vmcnt({2*NPF+1}) lgkmcnt(0)
    ''')
    stamp(a, 1)
    a.label('L_kg_loop')
    for i in range(5): a(f'v_mov_b32 v{P+i}, v{PN+i}')
    a(f'''
    s_mul_i32 s49, s40, {KC}
    s_add_u32 s49, s49, {WS_KV}
    s_add_u32 s40, s40, 4
    s_cmp_ge_u32 s47, 6
    s_cselect_b32 s40, s42, s40
    ''')
    params(PN)
    a(f'''
    v_lshlrev_b32 v{DT}, 16, v{P+4}
    v_and_b32 v{T1}, 0x7fff7fff, v{P+2}
    v_and_b32 v{T1+1}, 0x7fff7fff, v{P+3}
    v_mul_f32 v{DT}, {fx(LOG2E)}, v{DT}
    v_pk_max_u16 v{T1}, v{T1}, v{T1+1}
    v_exp_f32 v{DT}, v{DT}
    v_lshlrev_b32 v{T1+1}, 16, v{T1}
    v_max_u32 v{T1}, v{T1}, v{T1+1}
    v_cvt_pk_bf16_f32 v{DT}, v{DT}, v{DT}
    v_and_b32 v{DT}, s3, v{DT}
    v_max_u32_dpp v{T1}, v{T1}, v{T1} quad_perm:[1,0,3,2] row_mask:0xf bank_mask:0xf
    v_max_u32_dpp v{T1}, v{T1}, v{T1} quad_perm:[2,3,0,1] row_mask:0xf bank_mask:0xf
    v_max_u32_dpp v{T1}, v{T1}, v{T1} row_half_mirror row_mask:0xf bank_mask:0xf
    v_max_u32_dpp v{T1}, v{T1}, v{T1} row_mirror row_mask:0xf bank_mask:0xf
    v_readlane_b32 s33, v{T1}, 0
    v_readlane_b32 s34, v{T1}, 16
    v_readlane_b32 s78, v{T1}, 32
    v_readlane_b32 s79, v{T1}, 48
    s_max_u32 s33, s33, s34
    s_max_u32 s78, s78, s79
    s_max_u32 s33, s33, s78
    s_lshr_b32 s33, s33, 23
    s_max_u32 s33, s33, 40
    s_min_u32 s33, s33, 250
    s_sub_u32 s78, 266, s33
    s_lshl_b32 s78, s78, 23
    s_sub_u32 s79, s33, 25
    s_lshl_b32 s79, s79, 23
    ''')
    a.label('L_kg_half')
    if STAMP[0]: a('s_memtime s[96:97]\ns_memrealtime s[98:99]\ns_add_u32 m0, s47, 16\ns_waitcnt lgkmcnt(0)\nv_writelane_b32 v254, s96, m0\nv_writelane_b32 v255, s98, m0')
    prefetch()
    a(f'''
    v_lshlrev_b32 v{T1+2}, s48, v{P}
    v_lshlrev_b32 v{T1+3}, s48, v{P+1}
    v_and_b32 v{T1+2}, s3, v{T1+2}
    v_and_b32 v{T1+3}, s3, v{T1+3}
    v_mul_f32 v{T1+2}, {fx(LOG2E)}, v{T1+2}
    v_mul_f32 v{T1+3}, v{T1+3}, v{DT}
    v_exp_f32 v{T1+2}, v{T1+2}
    v_mul_f32 v{T1+3}, 0.15915494, v{T1+3}
    v_cvt_pk_bf16_f32 v{T1+2}, v{T1+2}, v{T1+2}
    v_and_b32 v{T1+2}, s3, v{T1+2}
    v_mul_f32 v{T1+2}, v{T1+2}, v{DT}
    v_mul_f32 v{T1+2}, {fx(-LOG2E)}, v{T1+2}
    ''')
    for p, w in ((1, W1), (8, W8), (256, W256)):
        if p == 1: a(f'v_exp_f32 v{T1}, v{T1+2}\nv_fract_f32 v{T1+1}, v{T1+3}')
        else: a(f'v_mul_f32 v{T1}, {fx(float(p))}, v{T1+2}\nv_mul_f32 v{T1+1}, {fx(float(p))}, v{T1+3}\nv_exp_f32 v{T1}, v{T1}\nv_fract_f32 v{T1+1}, v{T1+1}')
        a(f'v_cos_f32 v{w}, v{T1+1}\nv_sin_f32 v{w+1}, v{T1+1}\nv_mul_f32 v{w}, v{w}, v{T1}\nv_mul_f32 v{w+1}, v{w+1}, v{T1}')
    c0 = AP + 2*idx[0]
    a(f'v_lshlrev_b32 v{c0}, s48, v{P+2}\nv_lshlrev_b32 v{c0+1}, s48, v{P+3}\nv_and_b32 v{c0}, s3, v{c0}\nv_and_b32 v{c0+1}, s3, v{c0+1}')
    a(f'v_mul_f32 v{c0}, s78, v{c0}\nv_mul_f32 v{c0+1}, s78, v{c0+1}\nv_mov_b32 v{BP}, {fx(16384.0)}\nv_mov_b32 v{BP+1}, 0')
    k = [0]
    def out(vals, ng, u, comp):
        t = T0 + 4*(k[0] % 4); k[0] += 1
        return [f'v_cvt_pk_f16_f32 v{t+j}, {ng}v{vals[2*j]}, {ng}v{vals[2*j+1]}' for j in range(4)], f'ds_write_b128 v{WA+u}, {vr(t,4)} offset:{comp*8192}'
    achain = []
    for p in pts[1:]: achain.append(cmul(AP+2*idx[p], AP+2*idx[p-1], W1) if p <= 8 else cmul(AP+2*idx[p], AP+2*idx[p-256], W256))
    aouts = [(u, comp) for u in range(3) for comp in range(2)]
    pendw = None
    for u in range(4):
        if u == 2 and NPF:
            a('s_bitcmp1_b32 s47, 0\ns_cbranch_scc1 L_kg_nopf'); prefetch(); a.label('L_kg_nopf')
        for j in range(8):
            if j == 3 and pendw: a(pendw); pendw = None
            if u >= 2 and j in (1, 5, 7):
                uu, comp = aouts.pop(0)
                cv, w = out([AP+2*idx[apoint(4*uu + (r & 3), r >> 2)]+comp for r in range(8)], '-' if comp else '', uu, comp)
                for l in cv: a(l)
                a(w)
            if u < 2:
                for n in range(2 if j % 2 else 1):
                    if achain:
                        for l in achain.pop(0): a(l)
            if u == 0 and j == 0: continue
            for l in cmul(BP+2*j, BP+2*((j-1) % 8), W8): a(l)
        for comp in range(2):
            cv, w = out([BP+2*j+comp for j in range(8)], '', 4+u, comp)
            for l in cv: a(l)
            if comp == 0: a(w)
            else: pendw = w
    assert not achain and not aouts
    a(f's_add_u32 s47, s47, 1\ns_xor_b32 s48, s48, 16')
    a(pendw)
    for u in WU: a(f'v_xor_b32 v{WA+u}, 0x4000, v{WA+u}')
    a(f'''
    s_cmp_eq_u32 s47, 9
    s_cbranch_scc1 L_kg_sync
    s_bitcmp1_b32 s47, 0
    s_cbranch_scc0 L_kg_fin
    s_cmp_eq_u32 s47, 7
    s_cbranch_scc0 L_kg_half
    v_and_b32 v4, 7, v0
    v_lshlrev_b32 v4, 5, v4
    global_load_dword v5, v4, s[68:69] sc1
    s_branch L_kg_half
    ''')
    a.label('L_kg_sync')
    a('s_waitcnt lgkmcnt(0)\ns_barrier')
    a.label('L_kg_fin')
    XF_LD = 'buffer_load_dwordx3 v[6:8], v9, s[20:23], s31 offen sc1'
    a(f'''
    s_cmp_eq_u32 s47, 8
    s_cbranch_scc0 L_kg_fin2
    s_waitcnt vmcnt({NPF})
    v_cmp_gt_u32 vcc, 32, v5
    v_lshlrev_b32 v9, 7, v0
    s_mov_b32 s31, {WS_FLG}
    s_cbranch_vccnz L_v_sp0
    ''')
    a.label('L_v_bk0')
    a(XF_LD)
    a.label('L_kg_fin2')
    if STAMP[0]: a('s_memtime s[96:97]\ns_memrealtime s[98:99]\ns_add_u32 s33, s47, 1\ns_lshr_b32 s33, s33, 1\ns_add_u32 m0, s33, 24\ns_waitcnt lgkmcnt(0)\nv_writelane_b32 v254, s96, m0\nv_writelane_b32 v255, s98, m0')
    a('s_waitcnt lgkmcnt(0)')
    rds = []
    for kap in range(16):
        r = kap*8
        rds += [f'ds_read_b64_tr_b16 {ar(r,2)}, v{RA} offset:{kap*2048}', f'ds_read_b64_tr_b16 {ar(r+2,2)}, v{RA+1} offset:{kap*2048+512}',
                f'ds_read_b64_tr_b16 {ar(r+4,2)}, v{RA+2} offset:{kap*2048}', f'ds_read_b64_tr_b16 {ar(r+6,2)}, v{RA+3} offset:{kap*2048+512}']
    for l in rds[:12]: a(l)
    a(f'v_mov_b32 v{T1}, 0\nv_mul_f32 v{DT}, s79, v{DT}')
    for kap in range(16):
        a(f's_waitcnt lgkmcnt({min(8, 4*(15-kap))})')
        a(f'v_mfma_f32_32x32x16_f16 {vr(DD,16)}, {ar(kap*8,4)}, {ar(kap*8+4,4)}, {"0" if kap==0 else vr(DD,16)}')
        for l in rds[12+4*kap:16+4*kap]: a(l)
        if kap == 13: a(f'buffer_store_dword v{T1}, v{O3}, s[20:23], s49 offen')
    a('s_nop 7')
    for s in range(0, 12, 2): a(f'v_pk_mul_f32 {vr(DD+s,2)}, {vr(DD+s,2)}, {vr(DT,2)} op_sel_hi:[1,0]')
    V = lambda s: DD+s
    a(f'''
    v_cvt_pk_bf16_f32 v{T1+1}, v{V(1)}, v{V(3)}
    v_cvt_pk_bf16_f32 v{T1+2}, v{V(5)}, v{V(7)}
    v_cvt_pk_bf16_f32 v{T1+3}, v{V(11)}, v{V(11)}
    v_cvt_pk_bf16_f32 v{T1+4}, v{V(0)}, v{V(0)}
    v_permlane32_swap_b32 v{T1+1}, v{T1+2}
    v_readlane_b32 s33, v{T1+3}, 63
    v_readlane_b32 s34, v{T1+4}, 0
    v_cndmask_b32 v{V(1)}, v{V(1)}, v{V(0)}, s[50:51]
    v_cndmask_b32 v{V(3)}, v{V(3)}, v{V(4)}, s[50:51]
    v_cndmask_b32 v{V(5)}, v{V(5)}, v{V(4)}, s[50:51]
    v_cndmask_b32 v{V(7)}, v{V(7)}, v{V(8)}, s[50:51]
    v_and_b32 v{T1+3}, s33, v{MR}
    v_and_or_b32 v{T1+3}, s34, v{MK}, v{T1+3}
    ''')
    small = [f'buffer_store_short v{T1+2}, v{O2}, s[20:23], s49 offen offset:32', f'buffer_store_short_d16_hi v{T1+2}, v{O2}, s[20:23], s49 offen',
             f'buffer_store_short v{T1+2}, v{O2}, s[20:23], s49 offen offset:{32+KH+2}', f'buffer_store_short_d16_hi v{T1+2}, v{O2}, s[20:23], s49 offen offset:{KH+2}',
             f'buffer_store_dword v{T1+3}, v{O4}, s[20:23], s49 offen']
    Q0, Q1, Q2 = V(9), V(10), V(11)
    big = [([V(7-e) for e in range(8)], 1024), ([V(8-e) for e in range(8)], 1024+KG), ([Q2, Q2, Q1, Q1, Q1, Q0, Q0, Q0], 0), ([Q2, Q2, Q2, Q1, Q1, Q1, Q0, Q0], KG)]
    a(small.pop())
    for n, (vals, off) in enumerate(big):
        t = AP + 4*n
        for j in range(4):
            a(f'v_cvt_pk_bf16_f32 v{t+j}, v{vals[2*j]}, v{vals[2*j+1]}')
            if j == 1: a(small.pop())
        a(f'buffer_store_dwordx4 {vr(t,4)}, v{O1}, s[20:23], s49 offen offset:{off}')
    a(f'''
    s_cmp_eq_u32 s47, 9
    s_cbranch_scc1 L_kg_done
    s_waitcnt vmcnt(10)
    buffer_atomic_add v{VONE}, v{VSIG}, s[92:95], 0 offen
    s_mov_b32 s94, 0
    s_cmp_eq_u32 s47, 8
    s_cbranch_scc0 L_kg_loop
    ''')
    VT0, VEX, VU, VL16 = 228, 231, 233, 234
    RT, RK, RUB, REB = 235, 236, 237, 238
    a(f'''
    v_min3_u32 v6, v6, v7, v8
    v_cmp_gt_u32 vcc, 1, v6
    s_lshl_b32 s48, s39, 4
    s_xor_b32 s48, s48, 16
    s_lshr_b32 s33, s24, 1
    s_sub_u32 s33, s33, s24
    s_add_u32 s33, s33, 3
    s_lshl_b32 s33, s33, 15
    s_lshl_b32 s34, s39, 14
    s_add_u32 s34, s34, s33
    s_cbranch_vccnz L_v_sp1
    ''')
    a.label('L_v_bk1')
    for u in WU: a(f'v_add_u32 v{WA+u}, s34, v{WA+u}')
    for u in range(4): a(f'v_add_u32 v{RA+u}, s33, v{RA+u}')
    for i in range(3):
        a(f'''
        v_add_u32 v4, {64*i}, v0
        v_mul_u32_u24 v5, 10923, v4
        v_lshrrev_b32 v5, 16, v5
        v_mul_u32_u24 v6, 6, v5
        v_sub_u32 v6, v4, v6               ; unit
        v_bfe_u32 v7, v5, 1, 2             ; copy
        v_bfe_u32 v8, v5, 3, 1
        v_and_b32 v9, 1, v5
        v_lshl_add_u32 v8, v8, 1, v9       ; g
        v_lshlrev_b32 v8, 9, v8
        v_lshrrev_b32 v9, 4, v5
        v_lshl_add_u32 v8, v9, 6, v8
        v_sub_u32 v8, {2*(1024-192) + 2048 - 1024*i}, v8
        v_lshl_add_u32 v8, v6, 4, v8
        v_and_b32 v9, 1, v7
        v_mul_u32_u24 v10, {KG}, v9
        v_add_u32 v8, v8, v10
        v_add_u32 v7, v7, v9
        v_lshl_add_u32 v{VT0+i}, v7, 1, v8
        ''')
    for i in range(2):
        a(f'''
        v_add_u32 v4, {64*i}, v0
        v_mul_u32_u24 v5, 6554, v4
        v_lshrrev_b32 v5, 16, v5           ; L / 10
        v_mul_u32_u24 v6, 10, v5
        v_sub_u32 v6, v4, v6               ; unit
        v_lshrrev_b32 v7, 1, v5            ; copy
        v_and_b32 v8, 1, v5
        v_mul_u32_u24 v8, {2*KH}, v8
        v_add_u32 v8, {2*KG}, v8
        v_mov_b32 v11, {KH}
        ''')
        if i == 1:
            a(f'''
            v_cmp_le_u32 vcc, 16, v0
            v_subrev_u32 v4, 16, v0
            v_mul_u32_u24 v5, 5462, v4
            v_lshrrev_b32 v5, 16, v5           ; L' / 12
            v_mul_u32_u24 v9, 12, v5
            v_sub_u32 v4, v4, v9
            v_min_u32 v4, 5, v4
            v_mov_b32 v9, {KG}
            v_mov_b32 v10, 0
            v_cndmask_b32 v6, v6, v4, vcc
            v_cndmask_b32 v7, v7, v5, vcc
            v_cndmask_b32 v8, v8, v10, vcc
            v_cndmask_b32 v11, v11, v9, vcc
            ''')
        a(f'''
        v_and_b32 v9, 1, v7
        v_mad_u32_u24 v8, v9, v11, v8
        v_lshl_add_u32 v8, v6, 4, v8
        v_add_u32 v7, v7, v9
        v_lshl_add_u32 v8, v7, 1, v8
        v_add_u32 v{VEX+i}, {2048-1024*i}, v8
        ''')
    a(f'''
    v_lshlrev_b32 v{VL16}, 4, v0
    v_lshrrev_b32 v4, 4, v0            ; q
    v_and_b32 v5, 15, v0               ; r / n
    v_mul_u32_u24 v{VU}, {576*256}, v4
    v_lshl_add_u32 v{VU}, v5, 4, v{VU}
    v_and_b32 v6, 3, v0
    v_sub_u32 v6, 3, v6                ; copy
    v_lshrrev_b32 v7, 2, v5
    v_lshlrev_b32 v7, 3, v7
    v_mul_u32_u24 v{RT}, 192, v6
    v_lshl_add_u32 v{RT}, v4, 4, v{RT}
    v_sub_u32 v{RT}, v{RT}, v7
    s_mul_i32 s52, s24, 3072
    s_lshl_b32 s53, s24, 11
    s_add_u32 s53, s53, {EX}
    s_add_u32 s33, s53, {1280+24}
    v_add_u32 v239, s33, v{RT}
    s_add_u32 s33, s52, 24
    v_add_u32 v{RT}, s33, v{RT}
    v_mul_u32_u24 v{RK}, 320, v6
    v_lshl_add_u32 v{RK}, v4, 3, v{RK}
    v_sub_u32 v{RK}, v{RK}, v7
    s_add_u32 s33, s53, 24
    v_add_u32 v{RK}, s33, v{RK}
    v_lshlrev_b32 v7, 5, v5
    v_lshl_add_u32 v{RUB}, v4, 4, v7
    v_lshl_add_u32 v{REB}, v4, 3, v7
    s_mul_i32 s54, s24, 4608
    s_add_u32 s54, s54, {UB}
    s_add_u32 s55, s54, {US}           ; next
    s_add_u32 s56, s55, {US}           ; previous
    s_mul_i32 s57, s41, {KC}
    s_add_u32 s57, s57, {WS_KV-2048}
    s_lshl_b32 s58, s41, 8
    s_add_u32 s58, s58, {WS_XNT}
    v_lshlrev_b32 v8, 3, v4
    v_sub_u32 v8, v8, v5               ; 8q - rho
    s_barrier
    ''')
    def tdma(pr, so): return [f's_add_u32 m0, s52, {TB+pr*12288}', f's_add_u32 s34, s{so}, {(3-pr)*128}'], [f'buffer_load_dwordx4 v{VT0+i}, s[20:23], s34 offen offset:{i*1024} lds ; tag=t{pr}' for i in range(3)]
    def exdma(so): return ['s_mov_b32 m0, s53'], [f'buffer_load_dwordx4 v{VEX+i}, s[20:23], s{so} offen offset:{i*1024} lds ; tag=ex' for i in range(2)]
    ustep = f's_add_u32 s58, s58, {4*576*256-1024}'
    def udma(buf): return f's_add_u32 m0, s{buf}, 512', [f'buffer_load_dwordx4 v{VU}, s[20:23], s58 offen offset:{j*1024} sc1 lds ; tag=u' for j in range(4)]
    m, ld = udma(54); a(m)
    for j in range(4):
        a(ld[j])
        if j < 3: a(ustep)
    for pr in range(4):
        sc, ld = tdma(pr, 57)
        for l in sc + ld: a(l)
    sc, ld = exdma(57)
    for l in sc + ld: a(l)
    BAND = 240
    a('v_mov_b32 v10, 0\nv_mov_b32 v11, 0\nv_mov_b32 v9, 1.0\nv_lshl_add_u32 v7, v0, 3, s54')
    a(f'ds_write_b64 v7, v[10:11]\nds_write_b64 v7, v[10:11] offset:{US}')
    for fam, hw in ((0, 3), (1, 4)):
        for j in range(4):
            for e in range(2):
                a(f'v_add_u32 v4, {(2*j+e-8+hw) & 0xffffffff}, v8\nv_cmp_ge_u32 vcc, {2*hw}, v4\ns_nop 1\nv_cndmask_b32 v{5+e}, v10, v9, vcc')
            a(f'v_cvt_pk_bf16_f32 v{BAND+4*fam+j}, v5, v6')
    a('s_branch L_kg_loop')
    a.label('L_kg_done')
    stamp(a, 2)
    CA, CP, WD, WF, E0, TM, OU, SR = 32, 64, 96, 128, 152, 168, 184, 192
    VUC, VUN, VEP, VLP = 12, 13, 14, 15
    KP = [116, 128]
    tf = lambda s, g: ((s & 1)*48 + g*4)
    uf = lambda s, k: ar((s & 1)*48 + 16 + k*4, 4)
    def reads(s, ureg):
        out = []; d = s % 8
        for j in range(8):
            out.append(f'ds_read_b128 {uf(s,j)}, v{ureg} offset:{512 + 512*j - 64*d - 32}')
            g = j >> 1; off = TB + (d >> 1)*12288 + (2*(d & 1) + (g >> 1))*768 + (g & 1)*96 + 8*(j & 1)
            out.append(f'ds_read_b64 {ar(tf(s,g)+2*(j&1),2)}, v{RT} offset:{off}')
        return out
    for i in range(5): a(f's_and_b32 s33, s{41 if i < 4 else 42}, 1\ns_lshl_b32 s33, s33, 4\ns_lshr_b32 s{60+i}, s{60+i}, s33\ns_lshl_b32 s{60+i}, s{60+i}, 16')
    a(f'''
    v_add_u32 v{VUN}, s54, v{RUB}
    v_mov_b32 v10, 0
    v_mov_b32 v11, 0
    v_lshl_add_u32 v7, v0, 3, s56
    s_mov_b32 s29, 0
    s_mov_b32 s65, 0
    s_mov_b32 s66, {OOB}
    s_mov_b32 s40, s41
    s_waitcnt vmcnt(10)
    s_barrier
    ds_write_b64 v7, v[10:11]
    ''')
    for l in reads(0, VUN): a(l)
    for f in range(2): a(f'v_accvgpr_write_b32 a{KP[f]+8}, 0\nv_accvgpr_write_b32 a{KP[f]+9}, 0')
    a('s_waitcnt lgkmcnt(0)')
    ms = []; sb = []
    for s in range(8):
        sb.append(len(ms))
        order = [(g_, k) for g_ in range(4) for k in range(8-g_)]
        for n, (g_, k) in enumerate(order):
            nt = g_+k; c = vr(CA+nt*4, 4)
            first = s == 0 and g_ == 0
            last = s == 7 and not any(g2+k2 == nt for g2, k2 in order[n+1:])
            ms.append(f'v_mfma_f32_16x16x32_bf16 {vr(CP+nt*4,4) if last else c}, {ar(tf(s,g_),4)}, {uf(s,k)}, {"0" if first else c}')
        if s == 0:
            for k in range(4): ms.append(f'v_mfma_f32_16x16x32_bf16 {vr(WD+4*k,4)}, {uf(0,k)}, {vr(BAND,4)}, 0')
            for k in range(4): ms.append(f'v_mfma_f32_16x16x32_bf16 {vr(WD+16+4*k,4)}, {ar(96+4*k,4)}, {vr(BAND+4,4)}, 0')
            for k in range(4): ms.append(f'v_mfma_f32_16x16x32_bf16 {vr(CA+16+4*k,4)}, {ar(112,4)}, {uf(0,k)}, {vr(CA+16+4*k,4)}')
        if s == 2:
            for f in range(2):
                for ks in range(2):
                    for n2 in range(2*ks, 4):
                        o = n2 - 2*ks
                        ms.append(f'v_mfma_f32_16x16x32_bf16 {vr(CA+16+4*n2,4)}, {vr(WF+8*f+4*ks,4)}, {ar(KP[f]+2*(3-o),4)}, {vr(CA+16+4*n2,4)}')
    sb.append(len(ms))
    g = Gaps(ms)
    g.vec(0, f'v_mov_b32 v{VUC}, v{VUN}'); g.vec(0, f'v_add_u32 v{VEP}, s56, v{REB}')
    ure = [f'ds_read_b64 {vr(E0+2*n,2)}, v{VEP} offset:{512+512*n} ; tag=e{n}' for n in range(8)]
    exr = [f'ds_read_b128 {ar(96+4*k,4)}, v{VUN} offset:{512+512*k-48} ; tag=x' for k in range(4)] + [f'ds_read_b64 {ar(112+2*h,2)}, v239 offset:{8*h} ; tag=x' for h in range(2)]
    g.scalar(0, '@vm ex', strict=True)
    for i, l in enumerate(ure): g.vec(1+i//2, l)
    for i, l in enumerate(exr): g.vec(5+i, l)
    for s in range(8):
        b = sb[s]; r0 = b + (11 if s == 0 else 1)
        if s % 2 == 1: g.scalar(b, f'@vm t{((s+1) % 8)//2}' if s != 7 else '@vm u', strict=True)
        for i, l in enumerate(reads(s+1, VUC if s < 7 else VUN)): g.vec(r0+i, l + ' ; tag=r')
        g.scalar(sb[s+1]-1, 's_waitcnt lgkmcnt(0)', strict=True)
        if s % 2 == 1:
            sc, ld = tdma(s//2, 57)
            g.scalar(b+16, sc[0], strict=True); g.scalar(b+17, sc[1], strict=True)
            for i, l in enumerate(ld): g.vec(b+18+2*i, l, 3)
    g.scalar(12, '@lg e7', strict=True); g.scalar(25, '@lg x', strict=True)
    for i, (f, o) in enumerate([(f, o) for f in range(2) for o in range(4)]):
        g.vec(sb[1]+1+2*i, f'ds_read_b64 {ar(KP[f]+2*(3-o),2)}, v{RK} offset:{160*f + 96 - 32*o}')
    sc, ld = exdma(59)
    g.scalar(sb[2]+18, sc[0], strict=True)
    for i, l in enumerate(ld): g.vec(sb[2]+20+2*i, l, 3)
    m, ld = udma(55)
    g.scalar(sb[4]+16, m, strict=True)
    for j in range(4):
        g.vec(sb[4]+17+2*j, ld[j], 3)
        if j < 3: g.scalar(sb[4]+18+2*j, ustep, strict=True)
    nx = ['s_add_u32 s29, s29, 1', f's_mul_i32 s67, s40, {ST_ROW}', 's_add_u32 s40, s40, 4', 's_cmp_ge_u32 s29, 4', 's_cselect_b32 s40, s42, s40', 's_cselect_b32 s35, s39, 0',
          f's_mul_i32 s57, s40, {KC}', f's_add_u32 s57, s57, {WS_KV-2048}', 's_lshl_b32 s33, s35, 30', 's_add_u32 s59, s57, s33', 's_lshl_b32 s35, s35, 8', 's_sub_u32 s57, s57, s35',
          's_lshl_b32 s58, s40, 8', f's_add_u32 s58, s58, {WS_XNT}', 's_sub_u32 s35, s55, s35', f's_add_u32 s67, s67, {WS_ST}']
    gi = 1
    for l in nx: gi = g.scalar(gi, l) + 1
    assert gi < sb[1]
    g.vec(sb[5]+17, f'v_add_u32 v{VUN}, s35, v{RUB}')
    rot = ['s_mov_b32 s33, s56', 's_mov_b32 s56, s54', 's_mov_b32 s54, s55', 's_mov_b32 s55, s33', 's_mov_b32 s65, s60', 's_mov_b32 s60, s61', 's_mov_b32 s61, s62',
           's_mov_b32 s62, s63', 's_mov_b32 s63, s64', 's_mov_b32 s66, s67']
    gi = sb[6]+1
    for l in rot: gi = g.scalar(gi, l) + 1
    assert gi < sb[7]
    ch = [dict(earliest=sb[1]+2, deadline=sb[2]+22, ops=[(f'v_cvt_pk_bf16_f32 v{WF+n}, v{WD+2*n}, v{WD+2*n+1}', 1)]) for n in range(16)]
    g.fill(ch, start=sb[1]+2, width=2)
    def epi(y0, ntile, dreg, areg, start):
        ch = []
        for n in range(ntile):
            y = y0 + 4*n; u = E0 + 2*n
            for p in range(2):
                t = TM + 2*((2*n+p) % 8); o = OU + 2*(n % 4) + p
                ch.append(dict(earliest=start, ops=[(f'v_lshlrev_b32 v{t}, 16, v{u+p}', 1), (f'v_and_b32 v{t+1}, s3, v{u+p}', 1),
                      (f'v_fmac_f32 v{y+2*p}, s{dreg}, v{t}', 1), (f'v_fmac_f32 v{y+2*p+1}, s{dreg}, v{t+1}', 1), (f'v_cvt_pk_bf16_f32 v{o}, v{y+2*p}, v{y+2*p+1}', 1)]))
            ch.append(dict(ops=[(f'ds_write_b64 v{areg}, {vr(OU+2*(n%4),2)} offset:{512+512*n}', 2, [len(ch)-2, len(ch)-1])]))
        return ch
    g.vec(5, f'v_add_u32 v{VLP}, s56, v{VL16}')
    e = g.fill(epi(CP, 8, 65, VEP, 12), start=12, width=3)
    print('conv: epilogue ends at gap', e, 'steps', sb)
    sread = lambda n: [f'ds_read_b128 {vr(SR+4*i,4)}, v{VLP} offset:{512+i*1024} ; tag=s{i}' for i in range(n)]
    sstore = lambda n, so: [f'buffer_store_dwordx4 {vr(SR+4*i,4)}, v{VL16}, s[20:23], s{so} offen offset:{i*1024} sc1' for i in range(n)]
    for l in sread(4):
        while g.free(e) < 1: e += 1
        g.vec(e, l); e += 1
    assert e <= sb[4]-4, e
    late = sstore(4, 66)
    for gi, l in zip([sb[4], sb[5], sb[5]+24, sb[6]], late): g.vec(gi, l, 3)
    g.scalar(sb[4]-2, 's_cmp_eq_u32 s29, 5', strict=True)
    g.v[sb[4]-1].append('s_cbranch_scc1 L_cv_tail')
    body = Asm(); g.emit(body)
    a.label('L_cv_loop')
    if STAMP[0]: a('s_memtime s[96:97]\ns_memrealtime s[98:99]\ns_add_u32 m0, s29, 3\ns_waitcnt lgkmcnt(0)\nv_writelane_b32 v254, s96, m0\nv_writelane_b32 v255, s98, m0')
    for l in resolve_waits(body.lines): a(l)
    a('s_branch L_cv_loop')
    a.label('L_cv_tail')
    stamp(a, 14)
    a(f'''
    s_lshl_b32 s33, s24, 13
    s_add_u32 s33, s33, {RB}
    v_add_u32 v4, s33, v{VL16}
    s_and_b32 s33, s24, 2
    s_lshl_b32 s33, s33, 13
    s_lshl_b32 s34, s39, 12
    s_add_u32 s33, s33, s34
    s_add_u32 s33, s33, {RB}
    v_add_u32 v5, s33, v{VL16}
    s_lshl_b32 s34, s39, 11
    s_add_u32 s67, s67, s34
    s_add_u32 s34, s34, s54
    v_add_u32 v{VEP}, s34, v{REB}
    v_add_u32 v{VLP}, s34, v{VL16}
    ''')
    for n in range(8):
        a(f'ds_write_b128 v4, {vr(CA+4*n,4)} offset:{n*1024}')
        if n % 2 == 0: a(late[n//2])
    for l in ure[:4]: a(l)
    a('s_waitcnt lgkmcnt(0)\ns_barrier')
    for h in range(2):
        for n in range(4): a(f'ds_read_b128 {vr(CA+16*h+4*n,4)}, v5 offset:{h*8192+n*1024}')
    a('s_waitcnt lgkmcnt(0)')
    for r in range(0, 16, 2): a(f'v_pk_add_f32 {vr(CA+r,2)}, {vr(CA+r,2)}, {vr(CA+16+r,2)}')
    g = Gaps(['']*200, cap=2); e = g.fill(epi(CA, 4, 60, VEP, 0), width=3); g.m = g.m[:e]; g.emit(a)
    for l in sread(2): a(l)
    for i, l in enumerate(sstore(2, 67)): a(f's_waitcnt lgkmcnt({1-i})'); a(l)
    a(f'''
    s_waitcnt vmcnt(0)
    s_barrier
    buffer_store_dword v{VONE}, v{VSIG}, s[20:23], s36 offen sc1
    ''')
    stamp_out(a, 1, 76)
    a('s_endpgm')
    spin(a, 'L_v_sp0', 'L_v_bk0', 'global_load_dword v5, v4, s[68:69] sc1', 5, '32')
    spin(a, 'L_v_sp1', 'L_v_bk1', XF_LD, 6, '1', 'v_min3_u32 v6, v6, v7, v8')

if __name__ == '__main__':
    a = Asm(); v_role(a)
    l, n = fix_hazards(a.lines, True); print(len(l))
```

```python
from common5 import *
from vrole import v_role

LA1 = 13
FO = [(0, 0), (1, 0), (0, 1), (1, 1)]
def g1_dma(k):
    return (f's_add_u32 m0, s28, {k*8192}', f'buffer_load_dwordx4 v1, s[8:11], s{40+k} offen lds ; tag=w{k}',
            f'buffer_load_dwordx4 v1, s[12:15], s{40+k} offen offset:1024 lds ; tag=w{k}')
def g1_rd(k, i, half):
    mat, j = FO[i]; off = k*8192 + mat*1024 + half*512
    dst = AF + ((k & 1)*4 + i)*4 + 2*half
    return f'ds_read_b64_tr_b16 {vr(dst,2)}, v{2 + 2*(off >> 16) + j} offset:{off & 0xffff} ; tag=a{k}_{i}'
acc = lambda i, tt: ACC + (i*4+tt)*4
pend = lambda i, tt: PEND + (i*4+tt)*4
h_store = lambda tt, ho: f'buffer_store_dwordx4 {vr(ho,4)}, v8, s[16:19], s{30 if tt==0 else 77+tt} offen sc1'
VSIG, VONE, VPOLL, VLVL, VPOFF, VTHR, VTAB, VT = 216, 217, 218, 219, 220, 221, 222, 223
COUNT = f'buffer_atomic_add v{VONE}, v{VSIG}, s[92:95], 0 offen'
SIGNAL = f'buffer_store_dword v{VLVL}, v{VSIG}, s[20:23], s36 offen sc1'
LVLUP = f'v_add_u32 v{VLVL}, 1, v{VLVL}'
def poll_ld(tag): return f'buffer_load_dword v{VPOLL}, v{VPOFF}, s[4:7], 0 offen sc1 ; tag={tag}'
FREE_G = [3, 7, 10, 11, 15, 0]

def g1_block(kind, last_wait=None):
    ms = []
    for k in range(18):
        for i in range(4):
            for tt in range(4):
                d = pend(i, tt) if k == 17 else acc(i, tt)
                ms.append(f'v_mfma_f32_16x16x32_bf16 {vr(d,4)}, {vr(AF+((k&1)*4+i)*4,4)}, {xfrag(k,tt)}, {"0" if k==0 else vr(acc(i,tt),4)}')
    g = Gaps(ms); last = kind == 'last'
    for k in range(18):
        b = k*16; kn = (k+1) % 18
        if k % 3 == 2:
            g.scalar(b, f'@vm w{(k+3) % 18}' if not (last and k == 17) else last_wait, strict=True); g.scalar(b+1, 's_barrier', strict=True)
        rp = [1, 2, 4, 5, 8, 9, 12, 13]
        if not (last and k == 17):
            for i in range(4):
                for h in range(2): g.vec(b+rp[2*i+h], g1_rd(kn, i, h))
        for i in range(4):
            nk, ni = (k, i+1) if i < 3 else (kn, 0)
            if not (last and k == 17 and i == 3): g.scalar(b+4*i+3, f'@lg a{nk}_{ni}', strict=True)
        if not (last and k+LA1 >= 18):
            m0, d0, d1 = g1_dma((k+LA1) % 18)
            g.scalar(b+5, m0, strict=True); g.vec(b+6, d0, 3); g.vec(b+14, d1, 3)
        if k == 18-LA1 and not last:
            g.vec(b+2, 'v_add_u32 v1, s31, v1')
            for gi, t in [(8, 's_lshl_b32 s33, s31, 4'), (9, 's_add_u32 s37, s37, s33'), (10, 's_sub_u32 s31, s88, s31')]: g.scalar(b+gi, t, strict=True)
        if k == (11 if kind != 'first' else 17): g.vec(b+2, LVLUP); g.vec(b+3, SIGNAL, 3)
    if kind != 'first':
        g.scalar(0, 's_mov_b32 s30, s89', strict=True)
        for tt in range(1, 4): g.scalar(23+tt, f's_add_u32 s{77+tt}, s30, {tt*147456}')
    g.scalar(28, 's_mov_b32 s89, s37', strict=True)
    return g

def g1_geglu(g, name):
    ch = geglu_chains(pend, 2, h_store, dl=lambda i, tt: 17*16 + i*4 + tt - 1, early=lambda i, tt: max(0, i*4+tt-12))
    endg = g.fill(ch, width=5)
    print(name, 'geglu ends at gap', endg)

def last_block(a, role, prev, prefetch, last_wait, extra=None):
    g = g1_block('last', last_wait)
    pos = [3, 6, 10, 14, 15]
    for k, items in prefetch.items():
        b = k*16; ps = pos if k != 11 else [6, 7, 10, 14, 15]
        for n, (sc, vm) in enumerate(items):
            gp = b + ps[n]
            for x in sc:
                if x.startswith('v_'): g.vec(gp-2, x)
                else: g.scalar(gp-1, x, back=True)
            g.vec(gp, vm, 3 if vm.startswith('buffer') else 1)
    g.scalar(1, '@vm poll', strict=True)
    g.vec(1, f'v_cmp_gt_u32 vcc, v{VT}, v{VPOLL}'); g.scalar(2, f's_cbranch_vccnz L_{role}_sp0', strict=True); g.s[2].append(f'L_{role}_bk0:')
    if role == 'g':
        for gi, t in [(4, 's_lshl_b32 s33, s26, 7'), (6, f's_add_u32 s33, s33, {WS_FLG}'), (8, 's_add_u32 s4, s76, s33'), (9, 's_addc_u32 s5, s77, 0'), (10, 's_mov_b32 s6, 16')]:
            g.scalar(gi, t, strict=True)
        g.vec(8, f'v_lshrrev_b32 v{VPOFF}, 3, v{VPOFF}')
        g.vec(11, poll_ld('pf'), 3)
        b = 4*16
        g.vec(b+8, f'v_and_b32 v{VT}, 15, v{VTHR}'); g.vec(b+9, f'v_lshrrev_b32 v{VTHR}, 4, v{VTHR}')
        g.scalar(b+12, '@vm pf', strict=True)
        g.vec(b+12, f'v_cmp_gt_u32 vcc, v{VT}, v{VPOLL}'); g.scalar(b+14, 's_cbranch_vccnz L_g_sp1', strict=True); g.s[b+14].append('L_g_bk1:')
    if extra: extra(g)
    try:
        import copy
        g2 = copy.deepcopy(g); g1_geglu(g2, role + ' last'); g = g2
    except RuntimeError:
        for n in range(1, 40):
            g2 = copy.deepcopy(g)
            cand = [i for i in range(272) if g2.used[i] == 1]
            for i in cand[::max(1, len(cand)//(4*n))]: g2.used[i] -= 1
            try: g1_geglu(g2, role + f' last (overfill {n})'); g = g2; break
            except RuntimeError: continue
    body = Asm(); g.emit(body)
    for l in resolve_waits(body.lines, prev=prev): a(l)
    return body.lines

def tail_geglu(a):
    a(f's_mov_b32 s30, s89\ns_mov_b32 s33, s32\nv_mov_b32 v10, v9')
    for tt in range(1, 4): a(f's_add_u32 s{77+tt}, s30, {tt*147456}')
    for tt in range(4):
        ho = HO + 4*(tt & 1)
        P = [(pend(2*j, tt)+p, pend(2*j+1, tt)+p, TMP+4*j+p) for j in range(2) for p in (0, 2)]
        for g, u, t in P: a(f'v_pk_mul_f32 {vr(t,2)}, {vr(g,2)}, {vr(g,2)}')
        for g, u, t in P: a(f'v_pk_mul_f32 {vr(u,2)}, {vr(g,2)}, {vr(u,2)}')
        for g, u, t in P: a(f'v_pk_fma_f32 {vr(t,2)}, {vr(t,2)}, s[32:33], v[10:11] op_sel_hi:[1,1,0]')
        for g, u, t in P: a(f'v_pk_mul_f32 {vr(g,2)}, {vr(g,2)}, {vr(t,2)}')
        for g, u, t in P: a(f'v_exp_f32 v{g}, v{g}\nv_exp_f32 v{g+1}, v{g+1}')
        for g, u, t in P: a(f'v_pk_add_f32 {vr(g,2)}, {vr(g,2)}, 1.0 op_sel_hi:[1,0]')
        for g, u, t in P: a(f'v_rcp_f32 v{g}, v{g}\nv_rcp_f32 v{g+1}, v{g+1}')
        for g, u, t in P: a(f'v_pk_mul_f32 {vr(u,2)}, {vr(u,2)}, {vr(g,2)}')
        for n, (g, u, t) in enumerate(P): a(f'v_cvt_pk_bf16_f32 v{ho+n}, v{u}, v{u+1}')
        a(h_store(tt, ho))

G2ACC, G2AF, NF, PF = 48, 144, 8, 6
g2acc = lambda ct, tt: G2ACC + (ct*2+tt)*4
LA2 = 8
def g2_loads(k):
    r = (k % 12)*8
    return [f'buffer_load_dwordx4 {ar(r,4)}, v239, s[16:19], s60 offen sc1 ; tag=h{k%12}', f'buffer_load_dwordx4 {ar(r+4,4)}, v240, s[16:19], s60 offen sc1 ; tag=h{k%12}',
            f'buffer_load_dwordx4 v236, s[84:87], s61 offen lds ; tag=d{k%12}', f'buffer_load_dwordx4 v237, s[84:87], s61 offen offset:1024 lds ; tag=d{k%12}',
            f'buffer_load_dwordx4 v238, s[84:87], s61 offen offset:2048 lds ; tag=d{k%12}']
g2_m0 = lambda k: f's_add_u32 m0, s63, {(k%12)*12288}'

def korder_table():
    out = []
    for c in range(3):
        o = [10*p + 6 + q for p in range(3) if p != c for q in range(4)]
        grp = [[10*p + q for p in range(3) for q in range(4)], [10*p + 4 + q for p in range(3) for q in range(2)],
               [10*c + 6 + q for q in range(4)] + [30, 31], o[:6], o[6:] + [32, 33, 34, 35]]
        for r in range(8):
            t = []
            for n, gl in enumerate(grp): t += [gl[(i + r + (4*c if n < 2 else 0)) % len(gl)] for i in range(len(gl))]
            assert sorted(t) == list(range(36))
            out += t + [0]*28
    return out

def g_setup(a):
    srd(a, 84, 84, D*F*2+2048, -2048)
    a(f'''
    s_getpc_b64 s[72:73]
    ''')
    a.label('L_pc')
    a(f'''
    s_add_u32 s72, s72, korder_tab-L_pc
    s_addc_u32 s73, s73, 0
    s_and_b32 s33, s25, 7
    s_lshl_b32 s34, s82, 3
    s_add_u32 s33, s33, s34
    s_lshl_b32 s33, s33, 6
    v_add_u32 v160, s33, v0
    global_load_ubyte v{VTAB}, v160, s[72:73]
    s_lshl_b32 s33, s24, 3
    v_add_u32 v236, s33, v10
    v_mul_u32_u24 v236, 1152, v236
    v_and_b32 v160, 6, v10
    v_xor_b32 v160, v160, v11
    v_lshl_add_u32 v236, v160, 4, v236
    s_mul_i32 s33, s82, 384
    s_mul_i32 s34, s81, {36*32*1152}
    s_add_u32 s33, s33, s34
    s_add_u32 s33, s33, 2048
    v_add_u32 v236, s33, v236
    v_add_u32 v237, {(128-1024) & 0xffffffff}, v236
    v_add_u32 v238, {(256-2048) & 0xffffffff}, v236
    s_lshl_b32 s33, s25, 3
    s_lshl_b32 s34, s24, 1
    s_add_u32 s83, s33, s34            ; first token tile of this wave
    s_mul_i32 s33, s83, {144*1024}
    s_mul_i32 s34, s81, {36*1024}
    s_add_u32 s33, s33, s34
    v_lshl_add_u32 v239, v0, 4, s33
    v_add_u32 v240, {144*1024}, v239
    v_lshrrev_b32 v160, 5, v0
    v_bfe_u32 v161, v0, 2, 3
    v_and_b32 v162, 3, v0
    v_mul_u32_u24 v241, 3072, v160
    v_lshl_add_u32 v241, v161, 7, v241
    v_lshl_add_u32 v241, v162, 3, v241
    v_lshrrev_b32 v161, 1, v161
    v_lshl_add_u32 v241, v161, 5, v241
    v_xor_b32 v242, 32, v241
    v_xor_b32 v243, 64, v241
    v_xor_b32 v244, 96, v241
    s_mul_i32 s63, s24, 3072
    v_mov_b32 v{VTHR}, 0
    s_mov_b32 s33, 0x66554
    v_writelane_b32 v{VTHR}, s33, 0
    v_writelane_b32 v{VTHR}, s33, 1
    v_writelane_b32 v{VTHR}, s33, 2
    s_mov_b32 s33, 0x74400
    v_writelane_b32 v{VTHR}, s33, 3
    s_mov_b32 s35, 3
    ''')
    for w in (1, 2):
        for j in range(4): a(f'v_add_u32 v{241+4*w+j}, {w << 16}, v{241+j}')

def g_role(a, prev):
    pf = {}
    for n, k in enumerate([5, 6, 8, 9, 11, 12, 14, 15]):
        ld = g2_loads(n)
        pf[k] = [([f'v_readlane_b32 s62, v{VTAB}, {n}', 's_lshl_b32 s60, s62, 10'], ld[0]), ([f's_mul_i32 s61, s62, {32*1152}'], ld[1]), ([g2_m0(n)], ld[2]), ([], ld[3]), ([], ld[4])]
    hl = last_block(a, 'g', prev, pf, '@vm d1')
    stamp(a, 9)
    def rd(n, half):
        n %= 144; k, ct = divmod(n, 12)
        off = k*12288 + (ct >> 2)*1024 + half*6144
        return f'ds_read_b64_tr_b16 {vr(G2AF+(n%NF)*4+2*half,2)}, v{241+4*(off>>16)+(ct&3)} offset:{off&0xffff} ; tag=a{n}'
    a(f's_mov_b32 s29, 0\ns_mov_b32 s64, {LA2}\nv_readlane_b32 s62, v{VTAB}, {LA2}')
    for n in range(PF):
        for h in range(2): a(rd(n, h))
    tail_geglu(a)
    a('s_waitcnt lgkmcnt(0)')
    stamp(a, 10)
    ms = []
    for k in range(12):
        for ct in range(12):
            for tt in range(2):
                ms.append(f'v_mfma_f32_16x16x32_bf16 {vr(g2acc(ct,tt),4)}, {vr(G2AF+((k*12+ct)%NF)*4,4)}, {ar(k*8+tt*4,4)}, {vr(g2acc(ct,tt),4)}')
    g = Gaps(ms)
    vmg = [5, 9, 13, 17, 21]
    for k in range(12):
        b = k*24
        extra = {0: 1, 6: 1, 5: 15}.get(k)
        for gi, l in zip(vmg, g2_loads(k+LA2)): g.vec(b+gi, l, 3)
        if k in (0, 6): g.vec(b+1, poll_ld(f'p{k}'), 3)
        if k == 5: g.vec(b+11, LVLUP); g.vec(b+15, SIGNAL, 3)
        g.scalar(b+0, 's_lshl_b32 s60, s62, 10', strict=True); g.scalar(b+6, f's_mul_i32 s61, s62, {32*1152}', strict=True)
        g.scalar(b+8, g2_m0(k+LA2), strict=True)
        g.scalar(b+14, 's_add_u32 s64, s64, 1', strict=True)
        for ct in range(12):
            n = k*12+ct
            g0, g1 = b+2*ct, b+2*ct+1
            if (g1-b) in vmg or (g1-b) == extra: g1 = g0
            g.vec(g0, rd(n+PF, 0)); g.vec(g1, rd(n+PF, 1))
            g.scalar(b+2*ct+1, f'@lg a{(n+1)%144}', strict=True)
        g.vec(b+19, f'v_readlane_b32 s62, v{VTAB}, s64')
        if k % 2 == 1:
            gb = b + 2*(12-PF)
            g.scalar(gb-2, f'@vm d{(k+2)%12}' if k != 5 else '@vm h8', strict=True); g.scalar(gb, 's_barrier', strict=True)
        if k in (3, 9):
            g.vec(b+18, f'v_and_b32 v{VT}, 15, v{VTHR}'); g.vec(b+22, f'v_lshrrev_b32 v{VTHR}, 4, v{VTHR}')
        if k in (4, 10):
            g.scalar(b+2, f'@vm p{k-4}', strict=True)
            g.vec(b+2, f'v_cmp_gt_u32 vcc, v{VT}, v{VPOLL}')
            g.scalar(b+4, f's_cbranch_vccnz L_g_sp{k}', strict=True); g.s[b+4].append(f'L_g_bk{k}:')
    b = (12-LA2)*24
    g.scalar(b-24+2, 's_add_u32 s29, s29, 1', strict=True); g.scalar(b-24+16, 's_cmp_eq_u32 s29, 3', strict=True)
    g.scalar(b-24+18, 's_cselect_b32 s18, 0, s18', strict=True); g.scalar(b-24+22, 's_cselect_b32 s86, 0, s86', strict=True)
    g.scalar(286, 's_cmp_eq_u32 s29, 3', strict=True)
    body = Asm(); g.emit(body)
    bl = resolve_waits(body.lines)
    cut = [i for i, l in enumerate(bl) if l.startswith('v_mfma')][24]
    for l in bl[:cut]:
        a(re.sub(r', v\[\d+:\d+\]$', ', 0', l) if l.startswith('v_mfma') else l)
    a.label('L_g2_loop')
    if STAMP[0]: a('s_memtime s[96:97]\ns_memrealtime s[98:99]\ns_add_u32 s101, s29, 11\ns_waitcnt lgkmcnt(0)\ns_mov_b32 s97, m0\ns_mov_b32 m0, s101\nv_writelane_b32 v254, s96, m0\nv_writelane_b32 v255, s98, m0\ns_mov_b32 m0, s97')
    for l in bl[cut:]: a(l)
    a('s_cbranch_scc1 L_g2_done')
    for l in bl[:cut]: a(l)
    a('s_branch L_g2_loop')
    a.label('L_g2_done')
    stamp(a, 14)
    a(f'''
    s_lshl_b32 s33, s25, 4
    s_add_u32 s33, s33, s82
    s_lshl_b32 s33, s33, 2
    s_add_u32 s33, s33, s24            ; (m*16 + c)*4 + w
    s_mul_i32 s64, s33, 12288
    s_add_u32 s64, s64, {WS_PART}      ; + dest s * 16*12288
    s_mul_i32 s34, s81, 3072
    s_add_u32 s65, s64, s34
    s_mul_i32 s34, s81, {16*12288}
    s_add_u32 s66, s64, s34
    s_lshl_b32 s33, s33, 7
    s_add_u32 s67, s33, {WS_FLG+0x20000}
    v_lshlrev_b32 v4, 4, v0
    ''')
    OWN = 16
    for p in range(4):
        a(f's_cmp_eq_u32 s81, {p}\ns_cbranch_scc1 L_x_own{p}')
        a(f's_add_u32 s34, s65, {p*16*12288}')
        for j in range(3):
            r = g2acc(3*p+j, 0)
            for q in range(4): a(f'v_cvt_pk_bf16_f32 v{r+q}, v{r+2*q}, v{r+2*q+1}')
            a(f'buffer_store_dwordx4 {vr(r,4)}, v4, s[20:23], s34 offen offset:{j*1024} sc1')
        a(f's_branch L_x_nxt{p}')
        a.label(f'L_x_own{p}')
        for q in range(0, 24, 2): a(f'v_pk_mul_f32 {vr(OWN+q,2)}, {vr(g2acc(3*p,0)+q,2)}, 1.0 op_sel_hi:[1,0]')
        a.label(f'L_x_nxt{p}')
    srd(a, 4, 70, L*D*2)
    a(f'''
    s_mul_i32 s36, s82, 12
    s_mul_i32 s33, s81, 3
    s_add_u32 s36, s36, s33            ; first column tile
    s_mul_i32 s33, s36, {16*3641}
    s_lshr_b32 s34, s33, 16            ; first conv workgroup
    s_add_u32 s33, s33, {47*3641}
    s_lshr_b32 s33, s33, 16            ; last conv workgroup
    v_add_u32 v5, s34, v0
    v_min_u32 v5, s33, v5
    v_lshlrev_b32 v5, 7, v5
    s_mov_b32 s68, {WS_FLG+0x10000}
    buffer_load_dword v6, v5, s[20:23], s68 offen sc1
    v_and_b32 v12, 15, v0
    v_lshrrev_b32 v13, 4, v0
    v_mul_u32_u24 v2, 1152, v12
    v_lshl_add_u32 v2, v13, 3, v2
    s_mul_i32 s38, s83, {16*1152}
    s_lshl_b32 s34, s36, 5
    s_add_u32 s38, s38, s34
    s_add_u32 s39, s38, {16*1152}
    ''')
    X = lambda j, tt: 144 + (j*2+tt)*2
    S = lambda j, tt: 160 + (j*2+tt)*2
    for tt in range(2):
        for j in range(3): a(f'buffer_load_dwordx2 {vr(X(j,tt),2)}, v2, s[4:7], s{38+tt} offen offset:{32*j}')
    a(f'''
    v_lshrrev_b32 v12, 2, v0
    v_and_b32 v13, 3, v0
    v_mul_u32_u24 v1, {ST_ROW}, v12
    v_lshl_add_u32 v1, v13, 4, v1
    s_mul_i32 s37, s36, {16*ST_ROW}
    s_lshl_b32 s34, s83, 5
    s_add_u32 s37, s37, s34
    s_add_u32 s37, s37, {WS_ST}
    s_add_u32 s28, s63, 147456
    v_lshlrev_b32 v3, 6, v12
    v_lshl_add_u32 v3, v13, 3, v3
    v_add_u32 v3, s28, v3
    v_min_u32 v7, 2, v0
    v_add3_u32 v7, v7, s81, 1
    v_and_b32 v7, 3, v7
    v_lshlrev_b32 v7, 11, v7           ; PF of the other k-splits
    s_lshl_b32 s34, s81, 11
    v_mov_b32 v9, s34
    v_mov_b32 v10, {OOB}
    v_cmp_eq_u32 vcc, 0, v0
    s_load_dwordx2 s[72:73], s[0:1], 88
    v_cndmask_b32 v9, v10, v9, vcc
    s_waitcnt vmcnt(0)
    buffer_store_dword v{VONE}, v9, s[20:23], s67 offen sc1
    buffer_load_dword v8, v7, s[20:23], s67 offen sc1
    v_cmp_gt_u32 vcc, 1, v6
    s_cbranch_vccnz L_g_sps
    ''')
    a.label('L_g_bks')
    for j in range(3):
        a(f's_add_u32 m0, s28, {j*1024}\ns_add_u32 s34, s37, {j*16*ST_ROW}\nbuffer_load_dwordx4 v1, s[20:23], s34 offen sc1 lds')
    a('s_waitcnt vmcnt(3) lgkmcnt(0)\nv_cmp_gt_u32 vcc, 1, v8')
    srd(a, 8, 72, L*D*2)
    a('s_cbranch_vccnz L_g_spp')
    a.label('L_g_bkp')
    stamp(a, 7)
    P = lambda i, j: 48 + (i*3+j)*4
    for i in range(3):
        a(f's_add_u32 s33, s81, {i+1}\ns_and_b32 s33, s33, 3\ns_mul_i32 s33, s33, 3072\ns_add_u32 s34, s66, s33')
        for j in range(3): a(f'buffer_load_dwordx4 {vr(P(i,j),4)}, v4, s[20:23], s34 offen offset:{j*1024} sc1')
    a('s_waitcnt vmcnt(9)')
    for tt in range(2):
        for j in range(3): a(f'ds_read_b64_tr_b16 {vr(S(j,tt),2)}, v3 offset:{j*1024+32*tt}')
    a('s_mov_b32 s3, 0xffff0000')
    T = 96
    for i in range(3):
        a(f's_waitcnt vmcnt({6-3*i})')
        for j in range(3):
            for q in range(4): a(f'v_lshlrev_b32 v{T+2*q}, 16, v{P(i,j)+q}\nv_and_b32 v{T+2*q+1}, s3, v{P(i,j)+q}')
            for q in range(4): a(f'v_pk_add_f32 {vr(OWN+8*j+2*q,2)}, {vr(OWN+8*j+2*q,2)}, {vr(T+2*q,2)}')
    a('s_waitcnt lgkmcnt(0)')
    for j in range(3):
        for tt in range(2):
            f = OWN + 8*j + 4*tt; t = T; u = T+4; x = T+8
            for r in range(4): a(f'v_mul_f32 v{t+r}, {fx(-LOG2E)}, v{f+r}')
            for r in range(4): a(f'v_exp_f32 v{t+r}, v{t+r}')
            for p in range(2): a(f'v_lshlrev_b32 v{u+2*p}, 16, v{S(j,tt)+p}\nv_and_b32 v{u+2*p+1}, s3, v{S(j,tt)+p}')
            for p in (0, 2): a(f'v_pk_add_f32 {vr(t+p,2)}, {vr(t+p,2)}, 1.0 op_sel_hi:[1,0]')
            for p in (0, 2): a(f'v_pk_mul_f32 {vr(f+p,2)}, {vr(f+p,2)}, {vr(u+p,2)}')
            for r in range(4): a(f'v_rcp_f32 v{t+r}, v{t+r}')
            for p in range(2): a(f'v_lshlrev_b32 v{x+2*p}, 16, v{X(j,tt)+p}\nv_and_b32 v{x+2*p+1}, s3, v{X(j,tt)+p}')
            for p in (0, 2): a(f'v_pk_fma_f32 {vr(f+p,2)}, {vr(f+p,2)}, {vr(t+p,2)}, {vr(x+p,2)}')
            a(f'v_cvt_pk_bf16_f32 v{f}, v{f}, v{f+1}\nv_cvt_pk_bf16_f32 v{f+1}, v{f+2}, v{f+3}')
            a(f'buffer_store_dwordx2 {vr(f,2)}, v2, s[8:11], s{38+tt} offen offset:{32*j}')
    stamp_out(a, 1, 76)
    a('s_endpgm')
    spin(a, 'L_g_sp0', 'L_g_bk0', poll_ld('x').split(';')[0], VPOLL, f'v{VT}')
    for k in (1, 4, 10): spin(a, f'L_g_sp{k}', f'L_g_bk{k}', poll_ld('x').split(';')[0], VPOLL, f'v{VT}')
    spin(a, 'L_g_sps', 'L_g_bks', 'buffer_load_dword v6, v5, s[20:23], s68 offen sc1', 6, '1')
    spin(a, 'L_g_spp', 'L_g_bkp', 'buffer_load_dword v8, v7, s[20:23], s67 offen sc1', 8, '1')

def fused_kernel(a):
    a.label(NAME + '_kernel')
    a('s_cmp_ge_u32 s2, 256\ns_cbranch_scc1 L_end')
    stamp(a, 0)
    a('''
    s_load_dwordx2 s[70:71], s[0:1], 0
    s_load_dwordx4 s[72:75], s[0:1], 64
    s_load_dwordx4 s[92:95], s[0:1], 96
    s_load_dwordx2 s[84:85], s[0:1], 80
    s_load_dwordx8 s[8:15], s[0:1], 8
    s_load_dwordx4 s[16:19], s[0:1], 40
    ''')
    if OPT.get('cpf', 1):
        a('''
        s_getpc_b64 s[40:41]
        s_lshr_b32 s33, s2, 3
        s_lshl_b32 s33, s33, 11
        v_lshrrev_b32 v1, 4, v0
        v_lshl_add_u32 v1, v1, 7, s33
        v_min_u32 v1, code_end-%s_kernel-256, v1
        global_load_dword v253, v1, s[40:41]
        ''' % NAME)
    a('''
    v_lshrrev_b32 v1, 6, v0
    v_and_b32 v0, 63, v0
    v_readfirstlane_b32 s24, v1
    s_and_b32 s3, s2, 7
    s_lshr_b32 s31, s2, 3
    s_and_b32 s25, s3, 1
    s_lshl_b32 s25, s25, 3
    s_lshr_b32 s33, s31, 2
    s_add_u32 s25, s25, s33            ; m
    s_lshr_b32 s81, s3, 1              ; k split
    s_and_b32 s82, s31, 3
    s_lshl_b32 s26, s25, 2
    s_add_u32 s26, s26, s81            ; group
    s_and_b32 s27, s25, 7
    s_lshr_b32 s38, s24, 1             ; fh
    s_and_b32 s39, s24, 1              ; tg
    v_lshrrev_b32 v10, 3, v0
    v_and_b32 v11, 7, v0
    s_lshl_b32 s33, s25, 7
    s_lshl_b32 s34, s39, 6
    s_add_u32 s33, s33, s34
    s_lshl_b32 s34, s38, 3
    s_add_u32 s33, s33, s34
    v_add_u32 v12, s33, v10
    v_mul_u32_u24 v12, 1152, v12
    v_lshl_add_u32 v12, v11, 4, v12
    s_mov_b32 s33, s27
    ''')
    for j in range(9):
        a(f's_lshl_b32 s{41+2*j}, s33, 7')
        if j < 8: a(f's_add_u32 s33, s33, 1\ns_cmp_eq_u32 s33, 9\ns_cselect_b32 s33, 0, s33')
    a(f'''
    v_add_u32 v13, {16*1152}, v12
    s_mov_b32 s6, {L*D*2}
    s_mov_b32 s7, 0x20000
    s_add_u32 s33, s25, s81
    s_and_b32 s33, s33, 1
    s_lshl_b32 s33, s33, 2
    s_add_u32 s33, s33, s82
    s_cmp_eq_u32 s33, 7
    s_waitcnt lgkmcnt(0)
    s_cbranch_scc1 L_vrole
    s_mov_b32 s4, s70
    s_mov_b32 s5, s71
    ''')
    raw = lambda rg, j: [52, 16, 88, 124][rg] + j*4
    xld = lambda rg, j: f'buffer_load_dwordx4 {vr(raw(rg,j),4)}, v{12+(rg&1)}, s[4:7], s{41+2*j} offen'
    for rg in range(2):
        for j in range(9): a(xld(rg, j))
    a(f'v_add_u32 v12, {32*1152}, v12\nv_add_u32 v13, {32*1152}, v13\ns_mov_b32 s76, s94\ns_mov_b32 s77, s95\ns_mov_b32 s68, s92\ns_mov_b32 s69, s93')
    for j in range(9): a(f's_mul_i32 s{40+2*j}, s{41+2*j}, {64*9216//128}')
    srd(a, 20, 76, WS_SIZE)
    srd(a, 8, 72, D*F*2); srd(a, 12, 74, D*F*2+1024, -1024)
    a(f'''
    s_movk_i32 s33, 128
    s_cmp_eq_u32 s82, 3
    s_cselect_b32 s34, -2, -1
    s_cselect_b32 s90, s33, {OOB}
    s_cselect_b32 s31, {18*128}, s33
    s_cselect_b32 s88, s33, 256
    s_and_b32 s33, s26, s34
    s_and_b32 s91, s81, s34
    s_lshl_b32 s33, s33, 7
    s_add_u32 s33, s33, {WS_FLG}
    s_lshl_b32 s34, s82, 2
    s_add_u32 s36, s33, s34
    v_mov_b32 v{VSIG}, {OOB}
    s_cmp_eq_u32 s24, 0
    s_cselect_b32 s33, 0, {OOB}
    s_cselect_b32 s90, s90, {OOB}
    v_writelane_b32 v{VSIG}, s33, 0
    v_writelane_b32 v{VSIG}, s90, 1
    s_lshl_b32 s33, s26, 2
    s_add_u32 s33, s33, s82
    s_lshl_b32 s33, s33, 2
    s_add_u32 s33, s33, s24
    s_lshl_b32 s33, s33, 7
    s_add_u32 s33, s33, {WS_FLG+0x20000}
    s_sub_u32 s33, s33, s36
    v_mov_b32 v160, v{VSIG}
    v_writelane_b32 v160, s33, 2
    v_mov_b32 v{VLVL}, 0
    buffer_store_dword v{VLVL}, v160, s[20:23], s36 offen sc1
    v_mov_b32 v{VONE}, 1
    v_lshlrev_b32 v{VPOFF}, 5, v11
    v_mov_b32 v{VT}, 32
    s_lshl_b32 s33, s3, 5
    s_add_u32 s92, s92, s33
    s_addc_u32 s93, s93, 0
    s_mov_b32 s94, 4
    s_mov_b32 s95, 0x20000
    s_mul_i32 s37, s91, 18
    s_mul_i32 s33, s82, 5
    s_add_u32 s37, s37, s33            ; first 128-byte column line
    s_lshl_b32 s33, s24, 3
    v_add_u32 v1, s33, v10
    v_mul_u32_u24 v1, 9216, v1
    v_bfe_u32 v2, v0, 4, 1
    s_lshl_b32 s33, s39, 1
    v_or_b32 v2, s33, v2
    v_lshlrev_b32 v2, 1, v2
    v_xor_b32 v2, v2, v11
    v_lshl_add_u32 v1, v2, 4, v1
    s_lshl_b32 s33, s37, 7
    v_add_u32 v1, s33, v1
    s_lshl_b32 s28, s24, 11
    v_lshrrev_b32 v160, 4, v0          ; q
    v_bfe_u32 v161, v0, 2, 2           ; rr
    v_and_b32 v162, 3, v0
    v_lshlrev_b32 v2, 11, v160
    v_lshl_add_u32 v2, v161, 7, v2
    v_lshl_add_u32 v2, v162, 3, v2
    v_bfe_u32 v163, v0, 3, 2           ; (q&1)*2 + (rr>>1)
    s_lshl_b32 s33, s38, 1
    v_xor_b32 v163, s33, v163
    v_lshl_add_u32 v2, v163, 5, v2
    v_xor_b32 v3, 32, v2
    v_add_u32 v4, 0x10000, v2
    v_add_u32 v5, 0x10000, v3
    v_add_u32 v6, 0x20000, v2
    v_add_u32 v7, 0x20000, v3
    s_mul_i32 s33, s39, {4*144*1024}
    s_lshl_b32 s34, s38, 10
    s_add_u32 s34, s33, s34
    v_lshl_add_u32 v8, v0, 4, s34
    s_mul_i32 s30, s25, {8*144*1024}
    s_lshl_b32 s33, s37, 11
    s_add_u32 s37, s30, s33
    s_mov_b32 s32, {fx(GC1)}
    v_mov_b32 v9, {fx(GC0)}
    s_mov_b32 s3, 0xffff0000
    ''')
    XS, XB = 90112, 36864
    WR, RD0, XA, XO_ = 224, 226, 14, 230
    a(f'''
    s_lshl_b32 s33, s38, 2
    v_add_u32 v163, s33, v160
    v_xor_b32 v163, v163, v11
    s_lshl_b32 s33, s39, 11
    s_lshl_b32 s34, s38, 10
    s_add_u32 s34, s34, s33
    s_add_u32 s34, s34, {XS}
    v_lshl_add_u32 v{WR}, v10, 7, s34
    v_lshl_add_u32 v{WR}, v163, 4, v{WR}
    v_add_u32 v{WR+1}, {XB}, v{WR}
    v_and_b32 v164, 15, v0             ; t
    v_lshrrev_b32 v165, 1, v164
    v_xor_b32 v165, v165, v160
    s_add_u32 s33, s33, {XS}
    v_lshl_add_u32 v{RD0}, v164, 7, s33
    v_lshl_add_u32 v{RD0}, v165, 4, v{RD0}
    v_xor_b32 v{RD0+1}, 64, v{RD0}
    v_add_u32 v{RD0+2}, {XB}, v{RD0}
    v_add_u32 v{RD0+3}, {XB}, v{RD0+1}
    s_cmp_eq_u32 s82, 3
    s_cbranch_scc1 L_vset
    s_mul_i32 s59, s81, 9
    s_mul_i32 s34, s82, 3
    s_add_u32 s59, s59, s34
    s_add_u32 s58, s59, s38
    s_add_u32 s59, s59, 2
    v_lshrrev_b32 v165, 2, v0
    v_lshl_add_u32 v166, v165, 7, s33
    v_and_b32 v167, 1, v0
    v_lshl_add_u32 v166, v167, 3, v166
    v_bfe_u32 v167, v0, 1, 1
    v_xor_b32 v165, v10, v167
    ''')
    for i in range(2):
        a(f'''
        s_lshr_b32 s33, s{58+i}, 2
        s_sub_u32 s33, s33, s27
        s_cselect_b32 s34, 9, 0
        s_add_u32 s33, s33, s34
        s_lshl_b32 s33, s33, 12
        s_and_b32 s34, s{58+i}, 3
        s_lshl_b32 s34, s34, 1
        v_xor_b32 v167, s34, v165
        v_lshl_add_u32 v{XA+i}, v167, 4, v166
        v_add_u32 v{XA+i}, s33, v{XA+i}
        s_lshl_b32 s{58+i}, s{58+i}, 12
        ''')
    a(f'''
    s_mul_i32 s33, s25, {576*256}
    s_lshl_b32 s34, s39, 7
    s_add_u32 s33, s33, s34
    s_add_u32 s33, s33, {WS_XNT}
    s_add_u32 s58, s58, s33
    s_add_u32 s59, s59, s33
    s_lshl_b32 s34, s38, 11
    s_add_u32 s59, s59, s34
    v_lshlrev_b32 v{XO_}, 8, v10
    v_lshl_add_u32 v{XO_}, v11, 4, v{XO_}
    ''')
    g_setup(a)
    a('s_branch L_setdone')
    a.label('L_vset')
    a(f'v_mov_b32 v{XO_}, {OOB}\nv_mov_b32 v{XA}, v{RD0}\nv_mov_b32 v{XA+1}, v{RD0}\ns_mov_b32 s58, 0\ns_mov_b32 s59, 0\ns_mov_b32 s35, 5\ns_mov_b32 s86, 0\ns_mov_b32 s87, 0x20000')
    for r in range(236, 241): a(f'v_mov_b32 v{r}, {OOB}')
    a.label('L_setdone')
    srd(a, 16, 76, H_BYTES, WS_H)
    a('s_mov_b32 s33, 0x3f803f80')
    stamp(a, 1)
    S, Q = 208, 210
    tq = 0
    xrd = lambda k, rg: f'ds_read_b128 {xfrag(k, rg)}, v{RD0+2*(rg&1)+(k&1)} offset:{(k>>1)*4096} ; tag=x{k}'
    xtr = lambda i, rg: f'ds_read_b64_tr_b16 {vr(80+4*rg+2*i,2)}, v{XA+i} offset:{(rg&1)*XB} ; tag=xt{i}'
    for rg in range(4):
        m = []
        m.append(f's_waitcnt vmcnt({[9, 9, 9, 10][rg]})')
        m += [f'v_mov_b32 v{S}, 0', f'v_mov_b32 v{Q}, 0']
        for j in range(9):
            for r in range(4): m += [f'v_dot2c_f32_bf16 v{S}, s33, v{raw(rg,j)+r}', f'v_dot2c_f32_bf16 v{Q}, v{raw(rg,j)+r}, v{raw(rg,j)+r}']
        if rg > 0:
            t = Asm(); interleave(t, m, [[xtr(i, rg-1)] for i in range(2)] + [[xrd(k, rg-1)] for k in range(18)]); m = t.lines
        n0 = len(m)
        fin = Asm()
        for pat in ('quad_perm:[1,0,3,2]', 'quad_perm:[2,3,0,1]', 'row_half_mirror'):
            fin(f'v_add_f32_dpp v{S}, v{S}, v{S} {pat} row_mask:0xf bank_mask:0xf\nv_add_f32_dpp v{Q}, v{Q}, v{Q} {pat} row_mask:0xf bank_mask:0xf')
        fin(f'''
        v_mul_f32 v{S}, {fx(1.0/D)}, v{S}
        v_mul_f32 v{Q}, {fx(1.0/D)}, v{Q}
        v_fma_f32 v{Q}, -v{S}, v{S}, v{Q}
        v_max_f32 v{Q}, 0, v{Q}
        v_cvt_pk_bf16_f32 v{S}, v{Q}, v{S}
        v_lshlrev_b32 v{Q}, 16, v{S}
        v_and_b32 v{S}, s3, v{S}
        v_add_f32 v{Q}, {fx(1e-5)}, v{Q}
        v_cvt_pk_bf16_f32 v{Q}, v{Q}, v{Q}
        v_and_b32 v{Q}, s3, v{Q}
        v_sqrt_f32 v{Q}, v{Q}
        v_cvt_pk_bf16_f32 v{Q}, v{Q}, v{Q}
        v_and_b32 v{Q}, s3, v{Q}
        v_rcp_f32 v{Q}, v{Q}
        v_mul_f32 v{S}, v{S}, v{Q}
        ''')
        m += fin.lines
        for j in range(9):
            x0 = raw(rg, j); ts = []
            for r in range(4): ts.append(160 + 2*(tq % 8)); tq += 1
            for r in range(4): m += [f'v_lshlrev_b32 v{ts[r]}, 16, v{x0+r}', f'v_and_b32 v{ts[r]+1}, s3, v{x0+r}']
            for r in range(4): m.append(f'v_pk_fma_f32 {vr(ts[r],2)}, {vr(ts[r],2)}, {vr(Q,2)}, {vr(S,2)} op_sel_hi:[1,0,0] neg_lo:[0,0,1] neg_hi:[0,0,1]')
            for r in range(4): m.append(f'v_cvt_pk_bf16_f32 v{x0+r}, v{ts[r]}, v{ts[r]+1}')
            m.append(f'ds_write_b128 v{WR+(rg&1)}, {vr(x0,4)} offset:{j*4096}')
        if rg < 2: extra = [[xld(rg+2, j)] for j in range(9)]
        else:
            extra = []
            if rg == 2: extra.append([f's_add_u32 s{41+2*j}, s{40+2*j}, {32*9216}' for j in range(9)])
            for k in (range(0, 5) if rg == 2 else range(5, 11)):
                m0, d0, d1 = g1_dma(k); extra += [[m0], [d0], [d1]]
        interleave(a, m, extra, start=3, end=len(m)-20)
        a(f's_waitcnt {"vmcnt(16) " if rg == 3 else ""}lgkmcnt(0)\ns_barrier')
    stamp(a, 2)
    pre = Asm()
    for k in range(11):
        for l in g1_dma(k)[1:]: pre(l)
    n0 = len(pre.lines)
    pre(xrd(0, 3))
    for i in range(4):
        for h in range(2): pre(g1_rd(0, i, h))
    pre(xrd(1, 3))
    for k in (11, 12):
        for l in g1_dma(k): pre(l)
    pre('s_waitcnt lgkmcnt(7)')
    for l in pre.lines[n0:]: a(l)
    g = g1_block('first')
    rest = [xtr(0, 3), xtr(1, 3)] + [xrd(k, 3) for k in range(2, 18)]
    slots = [0, 0, 3, 3, 7, 7, 10, 10, 11, 11, 15, 15, 16, 16, 19, 19, 23, 23]
    for gi, l in zip(slots, rest): g.vec(gi, l)
    g.scalar(30, '@lg x17', strict=True)
    su = Asm()
    su(f'''
    s_lshl_b32 s33, s24, 12
    s_add_u32 s33, s33, {TOP}
    s_lshl_b32 s34, s38, 10
    s_add_u32 s34, s34, 2048
    s_mov_b32 s4, s68
    s_mov_b32 s5, s69
    s_mov_b32 s6, 0
    s_mov_b32 s29, 0
    ''')
    gi = 8
    for l in su.lines: gi = g.scalar(gi, l) + 1
    ch = [dict(earliest=26, ops=[(x, 1) for x in ['v_and_b32 v96, 15, v0', 'v_lshl_add_u32 v96, v96, 7, s33', 'v_bfe_u32 v97, v0, 4, 1', 'v_lshl_add_u32 v96, v97, 3, v96',
            'v_lshrrev_b32 v97, 5, v0', 'v_xor_b32 v97, v97, v11', 'v_lshl_add_u32 v96, v97, 4, v96', 'v_xor_b32 v97, 32, v96', 'v_xor_b32 v98, 64, v96', 'v_xor_b32 v99, 96, v96',
            'v_xor_b32 v100, v10, v11', 'v_lshlrev_b32 v100, 4, v100', 'v_lshl_add_u32 v100, v10, 7, v100', 'v_add_u32 v100, s33, v100', 'v_add_u32 v101, s34, v100']])]
    e = g.fill(ch, start=26); assert e <= 48
    wr = [f'ds_write_b64 v{96+rg}, {vr(80+4*rg+2*i,2)} offset:{i*2048}' for rg in range(4) for i in range(2)]
    for gi, l in zip([48, 51, 55, 58, 59, 63, 64, 67], wr): g.vec(gi, l, 2)
    for gi, l in zip([71, 74, 75], ['ds_read_b128 v[104:107], v100', 'ds_read_b128 v[108:111], v100 offset:1024', 'ds_read_b128 v[112:115], v101 ; tag=xo']): g.vec(gi, l)
    g.scalar(86, '@lg xo', strict=True)
    for gi, l in zip([87, 91, 95], [f'buffer_store_dwordx4 v[104:107], v{XO_}, s[20:23], s58 offen sc1', f'buffer_store_dwordx4 v[108:111], v{XO_}, s[20:23], s58 offen offset:2048 sc1',
                                    f'buffer_store_dwordx4 v[112:115], v{XO_}, s[20:23], s59 offen sc1']): g.vec(gi, l, 3)
    g.vec(6*16+3, COUNT, 3)
    first = Asm(); g.emit(first)
    stamp(a, 3)
    for l in resolve_waits(first.lines, prev=pre.lines): a(l)
    g = g1_block('loop')
    g.vec(12*16+10, poll_ld('poll'), 3)
    for gi, t in [(8, 's_add_u32 s29, s29, 1'), (9, 's_cmp_eq_u32 s29, 3'), (10, 's_cselect_b32 s6, 256, 0'), (4*16+13, 's_cmp_eq_u32 s29, 5'), (5*16+2, 's_cselect_b32 s10, 0, s10'), (5*16+4, 's_cselect_b32 s14, 0, s14'), (286, 's_cmp_lt_u32 s29, s35')]:
        g.scalar(gi, t, strict=True)
    g1_geglu(g, 'loop')
    body = Asm(); g.emit(body)
    a.label('L_g1_loop')
    if STAMP[0]: a('s_memtime s[96:97]\ns_memrealtime s[98:99]\ns_add_u32 m0, s29, 4\ns_waitcnt lgkmcnt(0)\nv_writelane_b32 v254, s96, m0\nv_writelane_b32 v255, s98, m0')
    for l in resolve_waits(body.lines): a(l)
    a('s_cbranch_scc1 L_g1_loop')
    stamp(a, 8)
    a('s_cmp_eq_u32 s82, 3\ns_cbranch_scc1 L_prole')
    g_role(a, body.lines)
    a.label('L_prole')
    a('s_nop 7')
    tail_geglu(a)
    a(f'{LVLUP}\ns_waitcnt vmcnt(0)\ns_barrier\n{SIGNAL}')
    stamp_out(a, 1, 76)
    a('s_endpgm')
    a.label('L_vrole')
    v_role(a)
    a.label('L_end')
    a('s_endpgm')

def main(argv):
    out = argv[0]
    STAMP[0] = '-s' in argv
    for x in argv:
        if '=' in x: OPT[x.split('=')[0]] = int(x.split('=')[1])
    if 'padat' in OPT: PAD.update(at=OPT['padat'], t=OPT['padt'])
    hdr = open(f'cdna_kernels/{NAME}.s.ref').read().split('; Override launch')[0]
    a = Asm(); fused_kernel(a)
    a.lines, n = fix_hazards(a.lines, '-v' in argv)
    print('instructions', len(a.lines), 'nops added', n)
    s = hdr + '; @launch grid=(256,1,1) block=(256,1,1) lds=163840\n.amdgcn_target "amdgcn-amd-amdhsa--gfx950"\n.text\n'
    s += f'.globl {NAME}_kernel\n.p2align 8\n.type {NAME}_kernel,@function\n' + a.text()
    t = korder_table()
    s += '.p2align 6\n.type korder_tab,@object\nkorder_tab:\n' + ''.join('.byte ' + ','.join(map(str, t[i:i+64])) + '\n' for i in range(0, len(t), 64)) + f'.size korder_tab, {len(t)}\ncode_end:\n'
    s += '.section .rodata,"a"\n.p2align 6\n' + kd(NAME + '_kernel', 512, 256, 102)
    open(out, 'w').write(s)

if __name__ == '__main__':
    main(sys.argv[1:])
```

```python
import sys, re, struct, math
from asmlib import *

NAME = 'recurrent_scan__ssm_conv_s4d__geglu_ffn__prompt'
L, D, F = 2048, 576, 4608
WS_H, WS_XNT, WS_ST, WS_KV, WS_PART = 0, 0x1400000, 0x1700000, 0x1A00000, 0x2000000
H_BYTES = 128*144*1024
T_BYTES = D*L*2
KV_V, KV_CH = 4160, 8320
PART_BYTES = 4*128*36*1024
def f2u(x): return struct.unpack('<I', struct.pack('<f', x))[0]
def fx(x): return hex(f2u(x))
LOG2E = 1.4426950408889634

def srd(a, d, base, size, add=0):
    if add == 0:
        a(f's_mov_b32 s{d}, s{base}\ns_mov_b32 s{d+1}, s{base+1}')
    elif add > 0:
        a(f's_add_u32 s{d}, s{base}, {add}\ns_addc_u32 s{d+1}, s{base+1}, 0')
    else:
        a(f's_sub_u32 s{d}, s{base}, {-add}\ns_subb_u32 s{d+1}, s{base+1}, 0')
    a(f's_mov_b32 s{d+2}, {size}\ns_mov_b32 s{d+3}, 0x20000')

def resolve_waits(lines, prev=None):
    prev = lines if prev is None else prev
    seq = list(prev) + list(lines); off = len(prev); out = []
    for i, l in enumerate(lines):
        m = re.match(r'@(vm|lg) (\S+)', l)
        if not m: out.append(l); continue
        kind, tag = m.groups(); n = 0; found = False
        for j in range(off+i-1, -1, -1):
            x = seq[j]
            isk = x.startswith(('buffer_', 'global_')) if kind == 'vm' else x.startswith('ds_')
            if not isk: continue
            t = re.search(r'tag=(\S+)', x)
            if t and t.group(1) == tag: found = True; break
            if t and not t.group(1).startswith('p'): n += 1
        assert found, (l, i)
        mx = 63 if kind == 'vm' else 15
        out.append(f's_waitcnt {"vmcnt" if kind=="vm" else "lgkmcnt"}({min(n, mx)})')
    return out

STAMP = [False]
PAD = {}
WS_DBG = 0x8000000
def stamp(a, i):
    if PAD.get('at') is not None:
        if i == 0: a('s_memrealtime s[96:97]\ns_waitcnt lgkmcnt(0)\ns_mov_b32 s101, s96')
        if i == PAD['at']:
            PAD['n'] = PAD.get('n', 0) + 1
            a(f"L_pad{PAD['n']}:\ns_memrealtime s[96:97]\ns_waitcnt lgkmcnt(0)\ns_sub_u32 s96, s96, s101\ns_cmp_lt_u32 s96, {PAD['t']}\ns_cbranch_scc1 L_pad{PAD['n']}")
        return
    if not STAMP[0]: return
    a(f's_memtime s[96:97]\ns_memrealtime s[98:99]\ns_waitcnt lgkmcnt(0)\nv_writelane_b32 v254, s96, {i}\nv_writelane_b32 v255, s98, {i}')
def stamp_out(a, kidx, ws):
    if PAD.get('at') == 15: a('s_waitcnt vmcnt(0)'); stamp(a, 15)
    if not STAMP[0]: return
    a(f"""
    s_waitcnt vmcnt(0)
    """)
    stamp(a, 15)
    a(f"""
    s_lshl_b32 s96, s2, 2
    s_add_u32 s96, s96, s24
    s_lshl_b32 s96, s96, 9
    s_add_u32 s96, s96, {WS_DBG + kidx*0x100000}
    v_mbcnt_lo_u32_b32 v253, -1, 0
    v_mbcnt_hi_u32_b32 v253, -1, v253
    v_lshl_add_u32 v253, v253, 3, s96
    global_store_dwordx2 v253, v[254:255], s[{ws}:{ws+1}]
    """)

def bf16r(a, dst, src):
    a(f'v_cvt_pk_bf16_f32 v{dst}, v{src}, v{src}\nv_and_b32 v{dst}, 0xffff0000, v{dst}')

def cmul(o, x, w):
    return [f'v_pk_mul_f32 {vr(o,2)}, {vr(x,2)}, {vr(w,2)} op_sel:[0,0] op_sel_hi:[1,0]',
            f'v_pk_fma_f32 {vr(o,2)}, {vr(x,2)}, {vr(w,2)}, {vr(o,2)} op_sel:[1,1,0] op_sel_hi:[0,1,1] neg_lo:[0,1,0]']

def a_point(sig, hh):
    if sig <= 4: return 4*hh + sig
    if sig <= 7: return 256 + 4*hh + 2*(sig-5)
    if sig <= 10: return 512 + 256*hh + 4*(sig-8)
    if sig <= 12: return 1024 + 512*hh + 8*(sig-11)
    if sig <= 14: return 1280 + 512*hh + 8*(sig-13)
    return 0

def kgen_kernel(a):
    a.label('kgen_kernel')
    a('''
    s_cmp_ge_u32 s2, 144
    s_cbranch_scc1 L_kg_end
    s_load_dwordx4 s[4:7], s[0:1], 8
    s_load_dwordx4 s[8:11], s[0:1], 24
    s_load_dwordx2 s[12:13], s[0:1], 40
    s_load_dwordx2 s[14:15], s[0:1], 104
    v_lshrrev_b32 v1, 6, v0
    v_and_b32 v0, 63, v0
    v_readfirstlane_b32 s16, v1
    s_lshl_b32 s17, s2, 2
    s_add_u32 s17, s17, s16            ; channel d
    s_lshl_b32 s18, s17, 8
    v_lshl_add_u32 v1, v0, 2, s18
    s_lshl_b32 s18, s17, 1
    v_mov_b32 v2, s18
    s_lshl_b32 s19, s16, 15
    s_waitcnt lgkmcnt(0)
    global_load_dword v4, v1, s[4:5]
    global_load_dword v5, v1, s[6:7]
    global_load_dword v6, v1, s[8:9]
    global_load_dword v7, v1, s[10:11]
    global_load_ushort v3, v2, s[12:13]
    ''')
    a(f's_mul_i32 s18, s17, {KV_CH}\ns_add_u32 s18, s18, {WS_KV}\ns_add_u32 s20, s14, s18\ns_addc_u32 s21, s15, 0\ns_add_u32 s22, s20, {KV_V}\ns_addc_u32 s23, s21, 0')
    a('v_and_b32 v18, 7, v0\nv_lshl_add_u32 v19, v0, 7, s19')
    for u in range(8):
        a(f'v_xor_b32 v{8+u}, {u}, v18\nv_lshl_add_u32 v{8+u}, v{8+u}, 4, v19')
    a('''
    v_lshrrev_b32 v18, 5, v0           ; G>>1 = hh
    v_bfe_u32 v19, v0, 2, 2            ; rr
    v_lshl_add_u32 v16, v18, 3, v19
    v_lshl_add_u32 v16, v16, 7, s19
    v_bfe_u32 v20, v0, 4, 1
    v_bfe_u32 v21, v0, 1, 1
    v_lshl_add_u32 v20, v20, 1, v21
    v_xor_b32 v20, v20, v19
    v_lshl_add_u32 v16, v20, 4, v16
    v_and_b32 v20, 1, v0
    v_lshl_add_u32 v16, v20, 3, v16
    v_xor_b32 v17, 64, v16
    s_waitcnt vmcnt(0)
    v_lshlrev_b32 v3, 16, v3
    ''')
    a(f'v_mul_f32 v3, {fx(LOG2E)}, v3\nv_exp_f32 v3, v3')
    bf16r(a, 3, 3)
    a('''
    v_and_b32 v20, 0x7fff0000, v6
    v_and_b32 v21, 0x7fff0000, v7
    v_lshlrev_b32 v22, 16, v6
    v_lshlrev_b32 v23, 16, v7
    v_and_b32 v22, 0x7fff0000, v22
    v_and_b32 v23, 0x7fff0000, v23
    v_max_u32 v20, v20, v21
    v_max_u32 v22, v22, v23
    v_max_u32 v20, v20, v22
    v_max_u32_dpp v20, v20, v20 quad_perm:[1,0,3,2] row_mask:0xf bank_mask:0xf
    v_max_u32_dpp v20, v20, v20 quad_perm:[2,3,0,1] row_mask:0xf bank_mask:0xf
    v_max_u32_dpp v20, v20, v20 row_half_mirror row_mask:0xf bank_mask:0xf
    v_max_u32_dpp v20, v20, v20 row_mirror row_mask:0xf bank_mask:0xf
    v_readlane_b32 s24, v20, 0
    v_readlane_b32 s25, v20, 16
    v_readlane_b32 s26, v20, 32
    v_readlane_b32 s27, v20, 48
    s_max_u32 s24, s24, s25
    s_max_u32 s26, s26, s27
    s_max_u32 s24, s24, s26
    s_lshr_b32 s24, s24, 23
    s_max_u32 s24, s24, 40
    s_min_u32 s24, s24, 250
    s_sub_u32 s25, 266, s24            ; A scale = 2^(12-(e-127))
    s_lshl_b32 s25, s25, 23
    s_sub_u32 s26, s24, 25             ; undo: 2 * 2^(e-127) * 2^-26
    s_lshl_b32 s26, s26, 23
    ''')
    W = {1: [24, 30], 8: [26, 32], 256: [28, 34]}
    AP = [40, 100]
    pts = sorted({a_point(s, h) for s in range(16) for h in range(2)})
    idx = {p: i for i, p in enumerate(pts)}
    assert len(pts) == 28
    for nn in range(2):
        un = (lambda d, s: f'v_lshlrev_b32 v{d}, 16, v{s}') if nn == 0 else (lambda d, s: f'v_and_b32 v{d}, 0xffff0000, v{s}')
        a(un(20, 4)); a(un(21, 5))
        a(f'v_mul_f32 v20, {fx(LOG2E)}, v20\nv_exp_f32 v20, v20')
        bf16r(a, 20, 20)
        a(f'v_mul_f32 v20, v20, v3\nv_mul_f32 v21, v21, v3')
        a(f'v_mul_f32 v20, {fx(-LOG2E)}, v20\nv_mul_f32 v21, 0.15915494, v21')
        for p in (1, 8, 256):
            w = W[p][nn]
            a(f'v_mul_f32 v22, {fx(float(p))}, v20\nv_mul_f32 v23, {fx(float(p))}, v21\nv_exp_f32 v22, v22\nv_fract_f32 v23, v23')
            a(f'v_cos_f32 v{w}, v23\nv_sin_f32 v{w+1}, v23\ns_nop 0\nv_mul_f32 v{w}, v{w}, v22\nv_mul_f32 v{w+1}, v{w+1}, v22')
        c0 = AP[nn] + 2*idx[0]
        a(un(c0, 6)); a(un(c0+1, 7))
        a(f'v_mul_f32 v{c0}, s25, v{c0}\nv_mul_f32 v{c0+1}, s25, v{c0+1}')
    def both(fn):
        x, y = fn(0), fn(1)
        for p, q in zip(x, y): a(p); a(q)
    for p in pts[1:]:
        if p <= 8: both(lambda nn: cmul(AP[nn]+2*idx[p], AP[nn]+2*idx[p-1], W[1][nn]))
        else: both(lambda nn: cmul(AP[nn]+2*idx[p], AP[nn]+2*idx[p-256], W[256][nn]))
    T0 = 160
    k = 0
    for nn in range(2):
        for comp in range(2):
            ng = '-' if comp else ''
            for u in range(4):
                t = T0 + 4*(k % 4); k += 1
                row = [a_point(4*u + (r & 3), r >> 2) for r in range(8)]
                for j in range(4):
                    a(f'v_cvt_pk_f16_f32 v{t+j}, {ng}v{AP[nn]+2*idx[row[2*j]]+comp}, {ng}v{AP[nn]+2*idx[row[2*j+1]]+comp}')
                a(f'ds_write_b128 v{8+u}, {vr(t,4)} offset:{(2*nn+comp)*8192}')
    BP = [180, 200]
    for nn in range(2): a(f'v_mov_b32 v{BP[nn]}, {fx(16384.0)}\nv_mov_b32 v{BP[nn]+1}, 0')
    for u in range(4):
        for j in range(8):
            if u == 0 and j == 0: continue
            both(lambda nn: cmul(BP[nn]+2*j, BP[nn]+2*((j-1) % 8), W[8][nn]))
        for nn in range(2):
            for comp in range(2):
                t = T0 + 4*(k % 4); k += 1
                for j in range(4):
                    a(f'v_cvt_pk_f16_f32 v{t+j}, v{BP[nn]+4*j+comp}, v{BP[nn]+4*j+2+comp}')
                a(f'ds_write_b128 v{12+u}, {vr(t,4)} offset:{(2*nn+comp)*8192}')
    a('s_waitcnt lgkmcnt(0)')
    FR, DD = 40, 180
    for half in range(2):
        for kk in range(8):
            kap = half*8 + kk; r = FR + kk*8
            a(f'ds_read_b64_tr_b16 {vr(r,2)}, v16 offset:{kap*2048}')
            a(f'ds_read_b64_tr_b16 {vr(r+2,2)}, v17 offset:{kap*2048+512}')
            a(f'ds_read_b64_tr_b16 {vr(r+4,2)}, v17 offset:{kap*2048}')
            a(f'ds_read_b64_tr_b16 {vr(r+6,2)}, v16 offset:{kap*2048+512}')
        a('s_waitcnt lgkmcnt(0)')
        for kk in range(8):
            r = FR + kk*8
            a(f'v_mfma_f32_32x32x16_f16 {vr(DD,16)}, {vr(r,4)}, {vr(r+4,4)}, {"0" if half==0 and kk==0 else vr(DD,16)}')
    a('''
    v_mul_f32 v3, s26, v3
    v_and_b32 v20, 31, v0
    v_lshlrev_b32 v20, 4, v20
    v_sub_u32 v20, 4080, v20           ; 4080 - 16 jj
    v_lshlrev_b32 v21, 3, v18
    v_sub_u32 v21, v20, v21
    v_lshlrev_b32 v22, 9, v18
    v_sub_u32 v22, v20, v22
    v_lshlrev_b32 v23, 10, v18
    v_sub_u32 v23, v20, v23
    v_and_b32 v24, 1, v0
    v_cmp_eq_u32 vcc, 1, v24
    ''')
    for s in range(15): a(f'v_mul_f32 v{DD+s}, v{DD+s}, v3')
    V = lambda s: DD+s
    a(f'v_cndmask_b32 v25, v{V(11)}, v{V(12)}, vcc\nv_cndmask_b32 v26, v{V(13)}, v{V(14)}, vcc')
    o = [40]
    def put(vals, addr, off, base):
        n = len(vals)//2; t = o[0]; o[0] += 4
        for j in range(n): a(f'v_cvt_pk_bf16_f32 v{t+j}, v{vals[2*j]}, v{vals[2*j+1]}')
        a(f'global_store_dwordx{n} v{addr}, {vr(t,n)}, s[{base}:{base+1}] offset:{off}')
    put([V(3), V(2), V(1), V(0)], 21, 8, 20); put([V(4), V(3), V(2), V(1)], 21, 8, 22)
    put([V(7), V(6), V(5), V(5)], 21, 8-512, 20); put([V(7), V(7), V(6), V(5)], 21, 8-512, 22)
    Q0, Q1, Q2 = V(8), V(9), V(10)
    put([Q2, Q2, Q1, Q1, Q1, Q0, Q0, Q0], 22, -1024, 20); put([Q2, Q2, Q2, Q1, Q1, Q1, Q0, Q0], 22, -1024, 22)
    for b in range(2):
        R0, R1, M = V(11+2*b), V(12+2*b), 25+b
        put([R1, R1, R1, M, R0, R0, R0, R0], 23, -2048-512*b, 20); put([R1, R1, R1, R1, M, R0, R0, R0], 23, -2048-512*b, 22)
    a(f'''
    v_mov_b32 v27, 0
    v_cvt_pk_bf16_f32 v28, v{V(0)}, v27
    v_cmp_eq_u32 vcc, 0, v0
    v_lshlrev_b32 v29, 2, v0
    v_add_u32 v29, 4096, v29
    v_cndmask_b32 v28, v27, v28, vcc
    s_mov_b64 exec, 0xffff
    global_store_dword v29, v27, s[20:21]
    global_store_dword v29, v28, s[22:23]
    ''')
    a.label('L_kg_end')
    a('s_endpgm')

GC0 = -2.0*math.sqrt(2.0/math.pi)*LOG2E
GC1 = GC0*0.044715
ACC, PEND, AF, XOV, TMP, HO = 16, 80, 144, 176, 208, 224
def xfrag(k, tt):
    return ar(k*16+tt*4, 4) if k < 16 else vr(XOV+(k-16)*16+tt*4, 4)

def geglu_chains(src, nfr, stores, dl=None, early=None):
    ch = []; tcount = 0
    for tt in range(4):
        ho = HO + 4*(tt & 1); cv = []
        for j in range(nfr):
            g0, u0 = src(2*j, tt), src(2*j+1, tt); mine = []
            for r in range(4):
                g, u, t = g0+r, u0+r, TMP + (tcount % 8); tcount += 1
                c = dict(ops=[(f'v_mul_f32 v{t}, v{g}, v{g}', 1), (f'v_mul_f32 v{u}, v{g}, v{u}', 1), (f'v_fma_f32 v{t}, v{t}, s32, v9', 1),
                              (f'v_mul_f32 v{g}, v{g}, v{t}', 1), (f'v_exp_f32 v{g}, v{g}', 2), (f'v_add_f32 v{g}, 1.0, v{g}', 1),
                              (f'v_rcp_f32 v{g}, v{g}', 2), (f'v_mul_f32 v{u}, v{u}, v{g}', 1)])
                if dl: c['deadline'] = dl(2*j, tt)
                if early: c['earliest'] = early(2*j+1, tt)
                ch.append(c); mine.append(len(ch)-1)
                if r & 1:
                    c2 = dict(ops=[(f'v_cvt_pk_bf16_f32 v{ho+2*j+(r>>1)}, v{u-1}, v{u}', 1, mine[-2:])])
                    if dl: c2['deadline'] = dl(2*j+1, tt)
                    ch.append(c2); cv.append(len(ch)-1)
        ch.append(dict(ops=[(stores(tt, ho), 3, cv)]))
    return ch

def gemm1_kernel(a):
    a.label('gemm1_kernel')
    a('''
    s_cmp_ge_u32 s2, 256
    s_cbranch_scc1 L_g1_end
    ''')
    stamp(a, 0)
    a('''
    s_load_dwordx2 s[70:71], s[0:1], 0
    s_load_dwordx4 s[72:75], s[0:1], 64
    s_load_dwordx2 s[76:77], s[0:1], 104
    v_lshrrev_b32 v1, 6, v0
    v_and_b32 v0, 63, v0
    v_readfirstlane_b32 s24, v1
    s_and_b32 s3, s2, 7
    s_lshr_b32 s31, s2, 3
    s_and_b32 s25, s3, 1
    s_lshl_b32 s25, s25, 3
    s_lshr_b32 s33, s31, 2
    s_add_u32 s25, s25, s33            ; m
    s_lshr_b32 s26, s3, 1
    s_lshl_b32 s26, s26, 2
    s_and_b32 s33, s31, 3
    s_add_u32 s26, s26, s33            ; ft
    s_add_u32 s27, s25, s26
    s_mul_i32 s33, s27, 57
    s_lshr_b32 s33, s33, 9
    s_mul_i32 s33, s33, 9
    s_sub_u32 s27, s27, s33
    s_mov_b32 s33, s27
    ''')
    for j in range(9):
        a(f's_lshl_b32 s{60+j}, s33, 7\ns_mul_i32 s{40+2*j}, s33, {64*9216}\ns_add_u32 s{41+2*j}, s{40+2*j}, {32*9216}')
        if j < 8: a(f's_add_u32 s33, s33, 1\ns_cmp_eq_u32 s33, 9\ns_cselect_b32 s33, 0, s33')
    a(f'''
    v_lshrrev_b32 v10, 3, v0
    v_and_b32 v11, 7, v0               ; unit
    s_lshl_b32 s33, s25, 7
    s_lshl_b32 s34, s24, 5
    s_add_u32 s33, s33, s34
    v_add_u32 v12, s33, v10
    v_mul_u32_u24 v12, 1152, v12
    v_lshl_add_u32 v12, v11, 4, v12
    v_add_u32 v13, {8*1152}, v12
    v_add_u32 v14, {16*1152}, v12
    v_add_u32 v15, {24*1152}, v12
    s_waitcnt lgkmcnt(0)
    ''')
    srd(a, 4, 70, L*D*2)
    RAW = 16
    raw = lambda j, rg: RAW + (j*4+rg)*4
    for j in range(9):
        for rg in range(4): a(f'buffer_load_dwordx4 {vr(raw(j,rg),4)}, v{12+rg}, s[4:7], s{60+j} offen')
    srd(a, 8, 72, D*F*2); srd(a, 12, 74, D*F*2+1024, -1024)
    srd(a, 16, 76, 0, WS_H); srd(a, 20, 76, T_BYTES, WS_XNT)
    a(f'''
    s_and_b32 s35, s26, 1              ; odd
    s_mul_i32 s36, s26, 576
    s_lshr_b32 s36, s36, 7             ; line L0
    s_add_u32 s37, s36, s35
    s_lshl_b32 s33, s24, 3
    v_add_u32 v1, s33, v10
    v_mul_u32_u24 v1, 9216, v1
    v_bfe_u32 v2, v0, 4, 1
    s_and_b32 s33, s24, 1
    s_lshl_b32 s33, s33, 1
    v_or_b32 v2, s33, v2
    v_lshlrev_b32 v2, 1, v2
    v_xor_b32 v2, v2, v11
    v_lshl_add_u32 v1, v2, 4, v1
    s_lshl_b32 s33, s37, 7
    v_add_u32 v1, s33, v1
    s_lshl_b32 s28, s24, 11
    ''')
    LA = 13
    def dma(k):
        return (f's_add_u32 m0, s28, {k*8192}', f'buffer_load_dwordx4 v1, s[8:11], s{40+k} offen lds ; tag=w{k}',
                f'buffer_load_dwordx4 v1, s[12:15], s{40+k} offen offset:1024 lds ; tag=w{k}')
    pro = []
    for k in range(LA): pro += list(dma(k))
    for l in pro: a(l)
    a(f'''
    v_lshrrev_b32 v208, 4, v0          ; q
    v_bfe_u32 v209, v0, 2, 2           ; rr
    v_and_b32 v210, 3, v0              ; c
    v_lshlrev_b32 v2, 11, v208
    v_lshl_add_u32 v2, v209, 7, v2
    v_lshl_add_u32 v2, v210, 3, v2
    v_and_b32 v211, 1, v208
    v_lshlrev_b32 v211, 1, v211
    v_lshrrev_b32 v212, 1, v209
    v_or_b32 v211, v211, v212          ; sw
    s_lshr_b32 s38, s24, 1             ; fh
    s_and_b32 s39, s24, 1              ; tg
    s_lshl_b32 s33, s38, 1
    v_xor_b32 v211, s33, v211
    v_lshl_add_u32 v2, v211, 5, v2
    v_xor_b32 v3, 32, v2
    v_add_u32 v4, 0x10000, v2
    v_add_u32 v5, 0x10000, v3
    v_add_u32 v6, 0x20000, v2
    v_add_u32 v7, 0x20000, v3
    s_lshl_b32 s34, s35, 1
    s_add_u32 s34, s34, s38
    s_xor_b32 s34, s34, s33
    s_lshl_b32 s58, s34, 5
    v_xor_b32 v232, s58, v2
    v_xor_b32 v233, s58, v4
    v_xor_b32 v234, s58, v6
    s_mul_i32 s33, s39, {4*144*1024}
    s_lshl_b32 s34, s38, 10
    s_add_u32 s34, s33, s34
    v_lshl_add_u32 v8, v0, 4, s34
    s_lshl_b32 s34, s38, 3
    s_add_u32 s34, s33, s34
    v_lshl_add_u32 v235, v0, 4, s34
    s_mul_i32 s59, s25, {8*144*1024}
    s_lshl_b32 s33, s37, 11
    s_add_u32 s30, s59, s33
    s_sub_u32 s30, s30, 2048
    s_mov_b32 s32, {fx(GC1)}
    v_mov_b32 v9, {fx(GC0)}
    s_mov_b32 s33, 0x3f803f80
    ''')
    stamp(a, 1)
    S, Q = 208, 212
    for rg in range(4): a(f'v_mov_b32 v{S+rg}, 0\nv_mov_b32 v{Q+rg}, 0')
    for j in range(9):
        a(f's_waitcnt vmcnt({min(63, 2*LA + 4*(8-j))})')
        for r in range(4):
            for rg in range(4):
                x = raw(j, rg)+r
                a(f'v_dot2c_f32_bf16 v{S+rg}, s33, v{x}\nv_dot2c_f32_bf16 v{Q+rg}, v{x}, v{x}')
    stamp(a, 2)
    for pat in ('quad_perm:[1,0,3,2]', 'quad_perm:[2,3,0,1]', 'row_half_mirror'):
        for r in range(8): a(f'v_add_f32_dpp v{S+r}, v{S+r}, v{S+r} {pat} row_mask:0xf bank_mask:0xf')
    for rg in range(4): a(f'v_mul_f32 v{S+rg}, {fx(1.0/D)}, v{S+rg}\nv_mul_f32 v{Q+rg}, {fx(1.0/D)}, v{Q+rg}')
    for rg in range(4): a(f'v_fma_f32 v{Q+rg}, -v{S+rg}, v{S+rg}, v{Q+rg}\nv_max_f32 v{Q+rg}, 0, v{Q+rg}')
    for rg in range(4): bf16r(a, S+rg, S+rg); bf16r(a, Q+rg, Q+rg)
    for rg in range(4): a(f'v_add_f32 v{Q+rg}, {fx(1e-5)}, v{Q+rg}'); bf16r(a, Q+rg, Q+rg)
    for rg in range(4): a(f'v_sqrt_f32 v{Q+rg}, v{Q+rg}')
    for rg in range(4): bf16r(a, Q+rg, Q+rg)
    for rg in range(4): a(f'v_rcp_f32 v{Q+rg}, v{Q+rg}')
    for rg in range(4): a(f'v_mov_b32 v{216+2*rg}, v{S+rg}\nv_mov_b32 v{224+2*rg}, v{Q+rg}')
    XS = 114688
    a(f'''
    v_lshrrev_b32 v236, 4, v0
    v_xor_b32 v237, v236, v11
    s_lshl_b32 s33, s24, 12
    s_add_u32 s33, s33, {XS}
    v_lshl_add_u32 v238, v10, 7, s33
    v_lshl_add_u32 v12, v237, 4, v238
    v_xor_b32 v13, 64, v12
    v_and_b32 v237, 15, v0             ; t
    v_lshrrev_b32 v238, 1, v237
    v_xor_b32 v238, v238, v236
    s_lshl_b32 s33, s39, 13
    s_add_u32 s33, s33, {XS}
    v_lshl_add_u32 v14, v237, 7, s33
    v_lshl_add_u32 v14, v238, 4, v14
    v_xor_b32 v15, 64, v14             ; ks=1
    ''')
    tq = 0
    for rnd in range(3):
        for jj in range(3):
            j = rnd*3 + jj
            for rg in range(4):
                ts = []
                for r in range(4): ts.append(240 + 2*(tq % 4)); tq += 1
                x0 = raw(j, rg)
                for r in range(4): a(f'v_lshlrev_b32 v{ts[r]}, 16, v{x0+r}\nv_and_b32 v{ts[r]+1}, 0xffff0000, v{x0+r}')
                for r in range(4): a(f'v_pk_add_f32 {vr(ts[r],2)}, {vr(ts[r],2)}, {vr(216+2*rg,2)} op_sel_hi:[1,0] neg_lo:[0,1] neg_hi:[0,1]')
                for r in range(4): a(f'v_cvt_pk_bf16_f32 v{x0+r}, v{ts[r]}, v{ts[r]+1}')
                for r in range(4): a(f'v_lshlrev_b32 v{ts[r]}, 16, v{x0+r}\nv_and_b32 v{ts[r]+1}, 0xffff0000, v{x0+r}')
                for r in range(4): a(f'v_pk_mul_f32 {vr(ts[r],2)}, {vr(ts[r],2)}, {vr(224+2*rg,2)} op_sel_hi:[1,0]')
                for r in range(4): a(f'v_cvt_pk_bf16_f32 v{x0+r}, v{ts[r]}, v{ts[r]+1}')
                if rnd > 0 and jj == 0 and rg == 0: a('s_waitcnt lgkmcnt(0)\ns_barrier')
                a(f'ds_write_b128 v{12+(rg&1)}, {vr(x0,4)} offset:{jj*16384 + rg*1024}')
        a('s_waitcnt lgkmcnt(0)\ns_barrier')
        for jj in range(3):
            for ks in range(2):
                for tt in range(4):
                    a(f'ds_read_b128 {xfrag((rnd*3+jj)*2+ks, tt)}, v{14+ks} offset:{jj*16384 + tt*2048}')
        if rnd == 0:
            a(f'''
            s_cmp_ge_u32 s26, 9
            s_cbranch_scc1 L_g1_noxt
            v_bfe_u32 v160, v0, 2, 2           ; rr
            v_lshl_add_u32 v161, v236, 3, v160 ; 8q + rr
            v_lshrrev_b32 v162, 1, v161
            v_and_b32 v162, 7, v162
            v_bfe_u32 v163, v0, 1, 1
            s_lshl_b32 s33, s24, 1
            v_or_b32 v163, s33, v163
            v_xor_b32 v162, v162, v163
            v_lshlrev_b32 v161, 7, v161
            v_lshl_add_u32 v161, v162, 4, v161
            v_and_b32 v163, 1, v0
            v_lshl_add_u32 v161, v163, 3, v161
            v_add_u32 v161, {XS}, v161
            v_xor_b32 v162, 32, v161
            s_lshl_b32 s33, s24, 4
            v_add_u32 v163, s33, v237
            v_lshlrev_b32 v163, 12, v163
            v_lshl_add_u32 v163, v236, 4, v163
            s_lshl_b32 s33, s27, 18
            s_lshl_b32 s34, s25, 8
            s_add_u32 s33, s33, s34
            ''')
            for i in range(4):
                a(f'ds_read_b64_tr_b16 {vr(16+4*i,2)}, v161 offset:{i*4096}\nds_read_b64_tr_b16 {vr(18+4*i,2)}, v162 offset:{i*4096+512}')
            a('s_waitcnt lgkmcnt(0)')
            for i in range(4): a(f'buffer_store_dwordx4 {vr(16+4*i,4)}, v163, s[20:23], s33 offen offset:{64*i}')
            a.label('L_g1_noxt')
    FO = [(0, 0), (1, 0), (0, 1), (1, 1)]
    def rd(k, i, half, areg=None, tagk=None):
        mat, j = FO[i]; off = k*8192 + mat*1024 + half*512
        reg = (2 + 2*(off >> 16) + j) if areg is None else areg(off >> 16)
        dst = AF + ((k & 1)*4 + i)*4 + 2*half
        return f'ds_read_b64_tr_b16 {vr(dst,2)}, v{reg} offset:{off & 0xffff} ; tag=a{k}_{i}'
    pre = [f's_waitcnt vmcnt({2*(LA-3)}) lgkmcnt(0)', 's_barrier'] + [rd(0, i, h) for i in range(4) for h in range(2)]
    pre += ['s_mov_b32 s29, 0', 's_mov_b32 s31, 128', 's_mov_b32 s34, 0', 's_waitcnt lgkmcnt(0)']
    stamp(a, 3)
    for l in pre: a(l)
    acc = lambda i, tt: ACC + (i*4+tt)*4
    pend = lambda i, tt: PEND + (i*4+tt)*4
    ms = []
    for k in range(18):
        for i in range(4):
            for tt in range(4):
                d = pend(i, tt) if k == 17 else acc(i, tt)
                ms.append(f'v_mfma_f32_16x16x32_bf16 {vr(d,4)}, {vr(AF+((k&1)*4+i)*4,4)}, {xfrag(k,tt)}, {"0" if k==0 else vr(acc(i,tt),4)}')
    g = Gaps(ms)
    for k in range(18):
        b = k*16; kn = (k+1) % 18
        if k % 3 == 2:
            g.scalar(b, f'@vm w{(k+3) % 18}', strict=True); g.scalar(b+1, 's_barrier', strict=True)
        rp = [1, 2, 4, 5, 8, 9, 12, 13]
        for i in range(4):
            for h in range(2):
                ar_ = (lambda w: 10) if (k == 17 and FO[i][1] == 0) else None
                g.vec(b+rp[2*i+h], rd(kn, i, h, ar_))
        for i in range(4):
            nk, ni = (k, i+1) if i < 3 else (kn, 0)
            g.scalar(b+4*i+3, f'@lg a{nk}_{ni}', strict=True)
        m0, d0, d1 = dma((k+LA) % 18)
        g.scalar(b+5, m0, strict=True); g.vec(b+6, d0, 3); g.vec(b+14, d1, 3)
        if k == 18-LA: g.vec(b+2, 'v_add_u32 v1, s31, v1')
        if k == 16: g.vec(b+2, 'v_xor_b32 v10, s34, v2')
    for gi, t in [(8, 's_add_u32 s29, s29, 1'), (9, 's_cmp_eq_u32 s29, 4'), (10, 's_cselect_b32 s34, s58, 0'), (12, 's_cselect_b32 s33, s35, 0'),
                  (13, 's_mul_i32 s33, s33, 640'), (14, 's_sub_u32 s31, 128, s33')]:
        g.scalar(gi, t, strict=True)
    for tt in range(1, 4): g.scalar(16+tt, f's_add_u32 s{77+tt}, s30, {tt*147456}')
    st = lambda tt, ho: f'buffer_store_dwordx4 {vr(ho,4)}, v8, s[16:19], s{30 if tt==0 else 77+tt} offen'
    ch = geglu_chains(pend, 2, st, dl=lambda i, tt: 17*16 + i*4 + tt - 1, early=lambda i, tt: max(0, i*4+tt-12))
    endg = g.fill(ch, width=5)
    print('gemm1 body: geglu ends at gap', endg, 'of', len(ms))
    assert endg <= 286
    g.scalar(286, 's_cmp_lt_u32 s29, 4', strict=True)
    body = Asm(); g.emit(body)
    bl = resolve_waits(body.lines)
    a('.p2align 6'); a.label('L_g1_loop')
    if STAMP[0]:
        a('s_memtime s[96:97]\ns_memrealtime s[98:99]\ns_add_u32 m0, s29, 4\ns_waitcnt lgkmcnt(0)\nv_writelane_b32 v254, s96, m0\nv_writelane_b32 v255, s98, m0')
    for l in bl: a(l)
    a(f's_mov_b32 s18, {H_BYTES}\ns_cbranch_scc0 L_g1_half\ns_add_u32 s30, s30, 2048\ns_branch L_g1_loop')
    a.label('L_g1_half')
    stamp(a, 8)
    a('s_add_u32 s30, s30, 2048')
    ms = []
    for k in range(18):
        for i in range(2):
            for tt in range(4):
                ms.append(f'v_mfma_f32_16x16x32_bf16 {vr(acc(i,tt),4)}, {vr(AF+((k&1)*4+i)*4,4)}, {xfrag(k,tt)}, {"0" if k==0 else vr(acc(i,tt),4)}')
    g = Gaps(ms, cap=3)
    for k in range(18):
        b = k*8
        if k % 3 == 2 and k < 17:
            g.scalar(b, f'@vm w{k+3}', strict=True); g.scalar(b, 's_barrier', strict=True)
        if k < 17:
            for i in range(2):
                for h in range(2): g.vec(b+[0, 1, 2, 4][2*i+h], rd(k+1, i, h, lambda w: 232+w))
        g.scalar(b+3, f'@lg a{k}_1', strict=True)
        if k < 17: g.scalar(b+7, f'@lg a{k+1}_0', strict=True)
        if k + LA < 18:
            m0, d0, d1 = dma(k+LA)
            g.scalar(b+2, m0, strict=True); g.vec(b+3, d0, 3); g.vec(b+6, d1, 3)
    for tt in range(1, 4): g.scalar(3+tt, f's_add_u32 s{77+tt}, s30, {tt*147456}')
    ch = geglu_chains(pend, 2, st, early=lambda i, tt: max(0, i*4+tt-12))
    npad = 40
    g.m += ['s_nop 0']*npad; g.s += [[] for _ in range(npad)]; g.v += [[] for _ in range(npad)]; g.used += [0]*npad
    endg = g.fill(ch, width=5)
    print('gemm1 half: geglu ends at gap', endg, 'of', len(ms))
    n = max(endg, len(ms)); g.m = g.m[:n]
    body2 = Asm(); g.emit(body2)
    for l in resolve_waits(body2.lines, prev=body.lines): a(l)
    stamp(a, 9)
    a(f'''
    s_cmp_eq_u32 s35, 1
    s_cselect_b32 s33, 1, 8
    s_lshl_b32 s34, s36, 1
    s_add_u32 s33, s33, s34
    s_lshl_b32 s33, s33, 10
    s_add_u32 s30, s59, s33
    ''')
    for tt in range(1, 4): a(f's_add_u32 s{77+tt}, s30, {tt*147456}')
    st2 = lambda tt, ho: f'buffer_store_dwordx2 {vr(ho,2)}, v235, s[16:19], s{30 if tt==0 else 77+tt} offen'
    ch = geglu_chains(acc, 1, st2)
    g = Gaps(['']*200, cap=3); endg = g.fill(ch, width=5); g.m = g.m[:endg]
    g.emit(a)
    stamp(a, 10)
    stamp_out(a, 1, 76)
    a.label('L_g1_end')
    a('s_endpgm')

def kd(name, nv, acc_off, ns=100):
    return f'''.amdhsa_kernel {name}
  .amdhsa_next_free_vgpr {nv}
  .amdhsa_next_free_sgpr {ns}
  .amdhsa_accum_offset {acc_off}
  .amdhsa_group_segment_fixed_size 0
  .amdhsa_kernarg_size 112
  .amdhsa_user_sgpr_count 2
  .amdhsa_user_sgpr_kernarg_segment_ptr 1
  .amdhsa_system_sgpr_workgroup_id_x 1
.end_amdhsa_kernel
'''

def build(kernels, launches, path, verbose=False):
    hdr = open(f'cdna_kernels/{NAME}.s.ref').read().split('; Override launch')[0]
    s = hdr + ''.join(f'; @launch kernel={k} grid=({g},1,1) block=({b},1,1) lds={l}\n' for k, g, b, l in launches)
    s += '.amdgcn_target "amdgcn-amd-amdhsa--gfx950"\n.text\n'
    for name, fn, nv, ao in kernels:
        a = Asm(); fn(a)
        a.lines, n = fix_hazards(a.lines, verbose)
        print(name, 'instructions', len(a.lines), 'nops added', n)
        s += f'.globl {name}\n.p2align 8\n.type {name},@function\n' + a.text()
    s += '.section .rodata,"a"\n'
    for name, fn, nv, ao in kernels: s += '.p2align 6\n' + kd(name, nv, ao)
    open(path, 'w').write(s)

if __name__ == "__main__":
    import gen2
    gen2.main(sys.argv[1:])
```

```python
import re

class Asm:
    def __init__(self):
        self.lines = []
    def __call__(self, s):
        for l in s.strip('\n').split('\n'):
            l = l.strip()
            if l: self.lines.append(l)
    def label(self, name): self.lines.append(name + ':')
    def text(self):
        out = []
        for l in self.lines:
            if l.endswith(':') or l.startswith('.') or l.startswith(';'): out.append(l)
            else: out.append('  ' + l)
        return '\n'.join(out) + '\n'

def vr(b, n=1, p='v'):
    return f'{p}{b}' if n == 1 else f'{p}[{b}:{b+n-1}]'
def ar(b, n=1): return vr(b, n, 'a')
def sr(b, n=1): return vr(b, n, 's')

_reg = re.compile(r'^-?(?:abs\()?\|?([vas])(?:(\d+)|\[(\d+):(\d+)\])\)?\|?$')
def regs_of(op):
    op = op.strip()
    if op in ('vcc', 'vcc_lo', 'vcc_hi'): return {('s', 'vcc')}
    if op in ('exec', 'exec_lo', 'exec_hi'): return {('s', 'exec')}
    if op == 'm0': return {('s', 'm0')}
    m = _reg.match(op)
    if not m: return set()
    k = m.group(1)
    if m.group(2) is not None: return {(k, int(m.group(2)))}
    return {(k, i) for i in range(int(m.group(3)), int(m.group(4)) + 1)}

TRANS = ('v_exp_f32', 'v_log_f32', 'v_rcp_f32', 'v_rsq_f32', 'v_sqrt_f32', 'v_sin_f32', 'v_cos_f32')

class Ins:
    def __init__(self, text):
        self.text = text
        t = text.split(';')[0].strip()
        parts = t.split(None, 1)
        self.op = op = parts[0]
        rest = parts[1] if len(parts) > 1 else ''
        ops, cur, depth = [], '', 0
        for ch in rest:
            if ch == '[': depth += 1
            if ch == ']': depth -= 1
            if ch == ',' and depth == 0: ops.append(cur.strip()); cur = ''
            else: cur += ch
        if cur.strip(): ops.append(cur.strip())
        mods = ''
        if ops:
            last = ops[-1].split(None, 1)
            ops[-1] = last[0]
            mods = last[1] if len(last) > 1 else ''
        self.ops, self.mods = ops, mods
        self.mfma = op.startswith('v_mfma')
        self.valu = op.startswith('v_') and not self.mfma
        self.trans = any(op.startswith(x) for x in TRANS)
        self.dot = op.startswith('v_dot')
        self.dpp = 'dpp' in op or 'quad_perm' in mods or 'row_' in mods
        self.perml = op.startswith('v_permlane')
        self.vmem = op.startswith(('buffer_', 'global_', 'flat_'))
        self.ds = op.startswith('ds_')
        self.salu = op.startswith('s_')
        self.ldsdma = self.vmem and (' lds' in ' ' + mods or '_lds_' in op)
        self.passes = 0
        if self.mfma: self.passes = 8 if '32x32' in op else 4
        R, W = set(), set()
        self.srcC = set(); self.srcAB = set(); self.stdata = set()
        ro = [regs_of(o) for o in ops]
        if self.mfma:
            W |= ro[0]; self.srcAB = ro[1] | ro[2]; self.srcC = ro[3]; R |= self.srcAB | self.srcC
        elif self.valu:
            if op.startswith('v_cmp'):
                W |= ro[0]
                for r in ro[1:]: R |= r
                if op.startswith('v_cmpx'): W.add(('s', 'exec'))
            elif op.startswith(('v_add_co', 'v_sub_co', 'v_addc_co', 'v_subb_co', 'v_subrev_co')):
                W |= ro[0] | ro[1]
                for r in ro[2:]: R |= r
            elif self.perml and 'swap' in op:
                W |= ro[0] | ro[1]; R |= ro[0] | ro[1]
            elif op == 'v_nop': pass
            else:
                W |= ro[0]
                for r in ro[1:]: R |= r
                if op.startswith(('v_fmac', 'v_dot2c', 'v_writelane', 'v_pk_fmac')) or self.dpp or 'sdwa' in op: R |= ro[0]
        elif self.vmem:
            store = 'store' in op or 'atomic' in op
            if op.startswith('buffer_wbl2') or op.startswith('buffer_inv'): pass
            elif self.ldsdma:
                for r in ro: R |= r
                R.add(('s', 'm0'))
            elif store:
                for r in ro: R |= r
                if op.startswith('buffer_'): self.stdata = ro[0]
                else: self.stdata = ro[1] if not ('atomic' in op and 'sc0' in mods) else ro[2]
                if 'atomic' in op and 'sc0' in mods: W |= ro[0]
                if not re.search(r'x3|x4', op): self.stdata = set()
            else:
                W |= ro[0]
                for r in ro[1:]: R |= r
        elif self.ds:
            if op.startswith(('ds_read', 'ds_bpermute', 'ds_permute', 'ds_swizzle')):
                W |= ro[0]
                for r in ro[1:]: R |= r
            else:
                for r in ro: R |= r
        elif self.salu:
            if op.startswith(('s_cmp', 's_waitcnt', 's_nop', 's_barrier', 's_branch', 's_cbranch', 's_endpgm', 's_sleep', 's_setprio', 's_bitcmp')):
                for r in ro: R |= r
            elif ro:
                W |= ro[0]
                for r in ro[1:]: R |= r
                if 'saveexec' in op: W.add(('s', 'exec'))
        self.R, self.W = R, W
        self.states = 1
        if op == 's_nop': self.states = int(ops[0], 0) + 1

def need_states(p, c):
    n = 0
    vW = {r for r in p.W if r[0] in 'va'}
    sW = {r for r in p.W if r[0] == 's'}
    if p.mfma:
        big = p.passes == 8
        if c.mfma:
            if vW & c.srcAB: n = max(n, 12 if big else 8)
            if vW & c.srcC and not (vW == c.srcC and c.passes == p.passes): n = max(n, 10 if big else 6)
            if vW & c.W and not (vW & c.srcC): n = max(n, 10 if big else 6)
        elif c.valu or c.vmem or c.ds:
            if vW & (c.R | c.W): n = max(n, 12 if big else 8)
        if c.valu and (p.srcC & c.W): n = max(n, 7 if big else 3)
        if (c.ds or c.vmem) and (p.srcC & c.W): n = max(n, 7 if big else 3)
    if p.valu:
        if c.mfma and vW & c.R: n = max(n, 3 if p.dot else 2)
        if p.trans and c.valu and not c.trans and vW & c.R: n = max(n, 1)
        if p.trans and (c.vmem or c.ds) and vW & c.R: n = max(n, 1)
        if c.valu and c.dpp and vW & c.R: n = max(n, 2)
        if c.perml and vW & c.R: n = max(n, 2)
        if c.op.startswith(('v_readlane', 'v_readfirstlane')) and vW & c.R: n = max(n, 1)
        if sW:
            if c.vmem and sW & c.R: n = max(n, 5)
            if c.valu and sW & c.R: n = max(n, 4 if c.op.startswith(('v_readlane', 'v_writelane')) else 2)
            if c.valu and ('s', 'vcc') in sW and c.op.startswith(('v_cndmask', 'v_addc', 'v_subb', 'v_div_fmas')): n = max(n, 2)
            if c.salu and sW & c.R: n = max(n, 1)
            if ('s', 'exec') in sW and (c.valu or c.mfma): n = max(n, 5)
        if p.dot and vW & (c.R | c.W):
            if not (c.op == p.op and c.ops[-1] == p.ops[0] and not (vW & (regs_of(c.ops[1]) | regs_of(c.ops[2])))) and not (c.op == p.op and c.op.startswith('v_dot2c') and not (vW & (regs_of(c.ops[1]) | regs_of(c.ops[2])))):
                n = max(n, 3)
        if ('sdwa' in p.op or 'op_sel' in p.mods and not p.op.startswith('v_pk')) and c.valu and vW & (c.R | c.W): n = max(n, 1)
    if p.salu and ('s', 'm0') in p.W and ('s', 'm0') in c.R and not c.salu: n = max(n, 1)
    if p.stdata and (p.stdata & c.W): n = max(n, 2)
    return n

def fix_hazards(lines, verbose=True):
    def is_ins(l): return not (l.endswith(':') or l.startswith('.') or l.startswith(';'))
    added = 0
    out = []
    hist = []
    for l in lines:
        if not is_ins(l):
            out.append(l); continue
        c = Ins(l)
        dist, need = 0, 0
        for p in reversed(hist):
            k = need_states(p, c) - dist
            if k > need: need = k; why = p
            dist += p.states
            if dist > 20: break
        if need > 0:
            if verbose: print(f'[haz] +{need} between "{why.text}" and "{l}"')
            out.append(f's_nop {need-1}'); hist.append(Ins(out[-1])); added += 1
        out.append(l); hist.append(c)
        if c.op in ('s_endpgm', 's_branch'): hist = []
        hist = hist[-24:]
    lab = {l[:-1]: i for i, l in enumerate(out) if l.endswith(':')}
    for i, l in enumerate(out):
        if is_ins(l) and l.startswith(('s_branch', 's_cbranch')):
            tgt = l.split(';')[0].split()[1]
            pre = [Ins(x) for x in out[max(0, i-24):i+1] if is_ins(x)]
            post = [Ins(x) for x in out[lab[tgt]:lab[tgt]+30] if is_ins(x)]
            for j, c in enumerate(post[:20]):
                dist = sum(q.states for q in post[:j])
                for p in reversed(pre):
                    if need_states(p, c) > dist:
                        raise RuntimeError(f'hazard across branch {l}: "{p.text}" -> "{c.text}"')
                    dist += p.states
                    if dist > 20: break
                if c.op in ('s_branch', 's_endpgm'): break
    return out, added

class Gaps:
    def __init__(self, mfmas, cap=2):
        self.m = list(mfmas); n = len(self.m)
        self.s = [[] for _ in range(n)]; self.v = [[] for _ in range(n)]
        self.used = [0]*n; self.cap = cap; self.resv = set()
    def scalar(self, g, text, strict=False, latest=None, back=False):
        n = len(self.m); k = g
        if not strict:
            while 0 <= k < n and (self.s[k] or self.used[k] >= 3 or k in self.resv): k += -1 if back else 1
            if not (0 <= k < n) or (latest is not None and k > latest): k = g
        self.s[k].append(text); return k
    def vec(self, g, text, cost=1):
        self.v[g].append(text); self.used[g] += cost
    def free(self, g): return self.cap - self.used[g]
    def fill(self, chains, start=0, end=None, width=4):
        n = len(self.m) if end is None else end
        pos = [0]*len(chains); done = [False]*len(chains); last = [-1]*len(chains); lastT = [False]*len(chains)
        first = 0; g = start
        while first < len(chains):
            if g >= n: raise RuntimeError(f'out of gaps: chain {first}/{len(chains)}')
            progress = True
            while progress and self.free(g) > 0:
                progress = False
                act = [c for c in range(first, len(chains)) if not done[c]][:width]
                cand = []
                for c in act:
                    ch = chains[c]
                    if ch.get('earliest', 0) > g: continue
                    op = ch['ops'][pos[c]]
                    if len(op) > 2 and not all(done[d] for d in op[2]): continue
                    cost = op[1]
                    if min(cost, self.cap) > self.free(g): continue
                    if cost >= 3 and self.s[g] and getattr(self, 'clean_vmem', False): continue
                    cand.append((c, cost))
                if not cand: break
                pick = None
                if self.used[g] == 0:
                    big = [x for x in cand if x[1] >= 2]
                    if big: pick = big[0]
                if pick is None:
                    other = [x for x in cand if last[x[0]] != g]
                    pick = (other or cand)[0]
                c, cost = pick
                self.vec(g, chains[c]['ops'][pos[c]][0], cost); last[c] = g; pos[c] += 1
                if pos[c] == len(chains[c]['ops']):
                    done[c] = True; chains[c]['finished'] = g
                    dl = chains[c].get('deadline')
                    if dl is not None and g > dl: raise RuntimeError(f'chain {c} missed deadline {dl} (at {g})')
                while first < len(chains) and done[first]: first += 1
                progress = True
            g += 1
        return g
    def stream(self, text, start, end=None, dense=False):
        SCCW = ('s_add', 's_sub', 's_cmp', 's_and', 's_or', 's_xor', 's_lshl', 's_lshr', 's_min', 's_max', 's_bit', 's_not', 's_ashr')
        n = len(self.m) if end is None else end
        own = set()
        gs, gv = start, start
        for line in text.strip().split('\n'):
            line = line.strip()
            if not line: continue
            grp = [x.strip() for x in line.split(' && ')]
            if grp[0].startswith('s_'):
                k0s, k0v = gs, gv
                while True:
                    pos = []; cs, cv = k0s, k0v; extra = {}
                    for x in grp:
                        j = min(cs, cv)
                        while True:
                            if j >= n: raise RuntimeError('stream out of gaps: ' + line)
                            if j >= cs and not self.s[j] and self.used[j] < 3 and j not in self.resv: pos.append((j, 's')); cs = j+1; cv = max(cv, j); break
                            if dense and j >= cv and j not in self.resv and self.free(j) - extra.get(j, 0) >= 1: pos.append((j, 'v')); extra[j] = extra.get(j, 0)+1; cv = j; cs = max(cs, j+1); break
                            j += 1
                    ok = True
                    for j in range(pos[0][0], pos[-1][0]+1):
                        if len(grp) > 1 and any(y.startswith(SCCW) for y in (self.s[j] if j > pos[0][0] else []) + self.v[j] if (j, y) not in own): ok = False
                    if ok: break
                    k0s = k0v = pos[0][0] + 1
                for (j, w), x in zip(pos, grp):
                    if w == 's': self.s[j].append(x)
                    else: self.vec(j, x, 1)
                    own.add((j, x))
                gs, gv = cs, cv
            else:
                x = grp[0]; c = Ins(x)
                cost = 3 if c.vmem else 2 if (c.trans or c.op.startswith('ds_write')) else 1
                j = gv
                while j < n and (self.free(j) < min(cost, self.cap) or (cost == 3 and self.s[j]) or (cost < 3 and j in self.resv) or (c.ds and any(y.startswith('v_') for y in self.v[j]))): j += 1
                if j >= n: raise RuntimeError('stream out of gaps: ' + line)
                self.vec(j, x, cost); gv = j; gs = max(gs, j+1)
        return max(gs, gv+1)
    def emit(self, a):
        for i, m in enumerate(self.m):
            a(m)
            for t in self.s[i]: a(t)
            for t in self.v[i]: a(t)
```

```python
from gen import *
WS_FLG = 0x3400000
WS_SIZE = 0x4000000
OOB = 0x7ffffff0
ST_ROW = 4352
TOP = 147456
SPIN = 200000
OPT = dict()
LAM = (-GC1)**(1.0/3.0)

def interleave(a, main, extra, start=0, end=None):
    end = len(main) if end is None else end
    n = len(extra); j = 0
    for i, l in enumerate(main):
        while j < n and i >= start and (i-start)*n >= j*(end-start):
            for x in extra[j]: a(x)
            j += 1
        a(l)
    while j < n:
        for x in extra[j]: a(x)
        j += 1

SPINID = [0]
def spin(a, name, back, load, reg, thr, post=''):
    a.label(name)
    a(f's_mov_b32 s100, {SPIN}')
    a.label(name + '_l')
    a(f'''
    {load}
    s_waitcnt vmcnt(0)
    {post}
    v_cmp_gt_u32 vcc, {thr}, v{reg}
    s_sub_u32 s100, s100, 1
    {f"v_writelane_b32 v254, s100, {40+SPINID[0]}" if STAMP[0] else ""}
    s_cbranch_scc1 {back}
    s_cbranch_vccz {back}
    s_sleep 2
    s_branch {name}_l
    ''')
    SPINID[0] += 1
```

```python
import sys, re, struct, math
from asmlib import *

NAME = 'recurrent_scan__ssm_conv_s4d__geglu_ffn__prompt'
L, D, F = 2048, 576, 4608
WS_H, WS_XNT, WS_ST, WS_KV, WS_PART = 0, 0x1400000, 0x1700000, 0x1A00000, 0x2000000
H_BYTES = 128*144*1024
T_BYTES = D*L*2
KV_V, KV_CH = 4160, 8320
PART_BYTES = 4*128*36*1024
def f2u(x): return struct.unpack('<I', struct.pack('<f', x))[0]
def fx(x): return hex(f2u(x))
LOG2E = 1.4426950408889634

def srd(a, d, base, size, add=0):
    if add == 0:
        a(f's_mov_b32 s{d}, s{base}\ns_mov_b32 s{d+1}, s{base+1}')
    elif add > 0:
        a(f's_add_u32 s{d}, s{base}, {add}\ns_addc_u32 s{d+1}, s{base+1}, 0')
    else:
        a(f's_sub_u32 s{d}, s{base}, {-add}\ns_subb_u32 s{d+1}, s{base+1}, 0')
    a(f's_mov_b32 s{d+2}, {size}\ns_mov_b32 s{d+3}, 0x20000')

def resolve_waits(lines, prev=None):
    prev = lines if prev is None else prev
    seq = list(prev) + list(lines); off = len(prev); out = []
    for i, l in enumerate(lines):
        m = re.match(r'@(vm|lg) (\S+)', l)
        if not m: out.append(l); continue
        kind, tags = m.groups(); n = 999
        for tag in tags.split('|'):
            c = 0; found = False
            for j in range(off+i-1, -1, -1):
                x = seq[j]
                isk = x.startswith(('buffer_', 'global_')) if kind == 'vm' else x.startswith('ds_')
                if not isk: continue
                t = re.search(r'tag=(\S+)', x)
                if t and t.group(1) == tag: found = True; break
                if t and not t.group(1).startswith('p'): c += 1
            assert found, (l, i)
            n = min(n, c)
        mx = 63 if kind == 'vm' else 15
        out.append(f's_waitcnt {"vmcnt" if kind=="vm" else "lgkmcnt"}({min(n, mx)})')
    return out

STAMP = [False]
PAD = {}
WS_DBG = 0x8000000
def stamp(a, i):
    if PAD.get('at') is not None:
        if i == 0: a('s_memrealtime s[96:97]\ns_waitcnt lgkmcnt(0)\ns_mov_b32 s101, s96')
        if i == PAD['at']:
            PAD['n'] = PAD.get('n', 0) + 1
            a(f"L_pad{PAD['n']}:\ns_memrealtime s[96:97]\ns_waitcnt lgkmcnt(0)\ns_sub_u32 s96, s96, s101\ns_cmp_lt_u32 s96, {PAD['t']}\ns_cbranch_scc1 L_pad{PAD['n']}")
        return
    if not STAMP[0]: return
    a(f's_memtime s[96:97]\ns_memrealtime s[98:99]\ns_waitcnt lgkmcnt(0)\nv_writelane_b32 v254, s96, {i}\nv_writelane_b32 v255, s98, {i}')
def stamp_out(a, kidx, ws):
    if PAD.get('at') == 15: a('s_waitcnt vmcnt(0)'); stamp(a, 15)
    if not STAMP[0]: return
    a(f"""
    s_waitcnt vmcnt(0)
    """)
    stamp(a, 15)
    a(f"""
    s_lshl_b32 s96, s2, 2
    s_add_u32 s96, s96, s24
    s_lshl_b32 s96, s96, 9
    s_add_u32 s96, s96, {WS_DBG + kidx*0x100000}
    v_mbcnt_lo_u32_b32 v253, -1, 0
    v_mbcnt_hi_u32_b32 v253, -1, v253
    v_lshl_add_u32 v253, v253, 3, s96
    global_store_dwordx2 v253, v[254:255], s[{ws}:{ws+1}]
    """)

def bf16r(a, dst, src):
    a(f'v_cvt_pk_bf16_f32 v{dst}, v{src}, v{src}\nv_and_b32 v{dst}, 0xffff0000, v{dst}')

def cmul(o, x, w):
    return [f'v_pk_mul_f32 {vr(o,2)}, {vr(x,2)}, {vr(w,2)} op_sel:[0,0] op_sel_hi:[1,0]',
            f'v_pk_fma_f32 {vr(o,2)}, {vr(x,2)}, {vr(w,2)}, {vr(o,2)} op_sel:[1,1,0] op_sel_hi:[0,1,1] neg_lo:[0,1,0]']

def a_point(sig, hh):
    if sig <= 4: return 4*hh + sig
    if sig <= 7: return 256 + 4*hh + 2*(sig-5)
    if sig <= 10: return 512 + 256*hh + 4*(sig-8)
    if sig <= 12: return 1024 + 512*hh + 8*(sig-11)
    if sig <= 14: return 1280 + 512*hh + 8*(sig-13)
    return 0

def kgen_kernel(a):
    a.label('kgen_kernel')
    a('''
    s_cmp_ge_u32 s2, 144
    s_cbranch_scc1 L_kg_end
    s_load_dwordx4 s[4:7], s[0:1], 8
    s_load_dwordx4 s[8:11], s[0:1], 24
    s_load_dwordx2 s[12:13], s[0:1], 40
    s_load_dwordx2 s[14:15], s[0:1], 104
    v_lshrrev_b32 v1, 6, v0
    v_and_b32 v0, 63, v0
    v_readfirstlane_b32 s16, v1
    s_lshl_b32 s17, s2, 2
    s_add_u32 s17, s17, s16            ; channel d
    s_lshl_b32 s18, s17, 8
    v_lshl_add_u32 v1, v0, 2, s18
    s_lshl_b32 s18, s17, 1
    v_mov_b32 v2, s18
    s_lshl_b32 s19, s16, 15
    s_waitcnt lgkmcnt(0)
    global_load_dword v4, v1, s[4:5]
    global_load_dword v5, v1, s[6:7]
    global_load_dword v6, v1, s[8:9]
    global_load_dword v7, v1, s[10:11]
    global_load_ushort v3, v2, s[12:13]
    ''')
    a(f's_mul_i32 s18, s17, {KV_CH}\ns_add_u32 s18, s18, {WS_KV}\ns_add_u32 s20, s14, s18\ns_addc_u32 s21, s15, 0\ns_add_u32 s22, s20, {KV_V}\ns_addc_u32 s23, s21, 0')
    a('v_and_b32 v18, 7, v0\nv_lshl_add_u32 v19, v0, 7, s19')
    for u in range(8):
        a(f'v_xor_b32 v{8+u}, {u}, v18\nv_lshl_add_u32 v{8+u}, v{8+u}, 4, v19')
    a('''
    v_lshrrev_b32 v18, 5, v0           ; G>>1 = hh
    v_bfe_u32 v19, v0, 2, 2            ; rr
    v_lshl_add_u32 v16, v18, 3, v19
    v_lshl_add_u32 v16, v16, 7, s19
    v_bfe_u32 v20, v0, 4, 1
    v_bfe_u32 v21, v0, 1, 1
    v_lshl_add_u32 v20, v20, 1, v21
    v_xor_b32 v20, v20, v19
    v_lshl_add_u32 v16, v20, 4, v16
    v_and_b32 v20, 1, v0
    v_lshl_add_u32 v16, v20, 3, v16
    v_xor_b32 v17, 64, v16
    s_waitcnt vmcnt(0)
    v_lshlrev_b32 v3, 16, v3
    ''')
    a(f'v_mul_f32 v3, {fx(LOG2E)}, v3\nv_exp_f32 v3, v3')
    bf16r(a, 3, 3)
    a('''
    v_and_b32 v20, 0x7fff0000, v6
    v_and_b32 v21, 0x7fff0000, v7
    v_lshlrev_b32 v22, 16, v6
    v_lshlrev_b32 v23, 16, v7
    v_and_b32 v22, 0x7fff0000, v22
    v_and_b32 v23, 0x7fff0000, v23
    v_max_u32 v20, v20, v21
    v_max_u32 v22, v22, v23
    v_max_u32 v20, v20, v22
    v_max_u32_dpp v20, v20, v20 quad_perm:[1,0,3,2] row_mask:0xf bank_mask:0xf
    v_max_u32_dpp v20, v20, v20 quad_perm:[2,3,0,1] row_mask:0xf bank_mask:0xf
    v_max_u32_dpp v20, v20, v20 row_half_mirror row_mask:0xf bank_mask:0xf
    v_max_u32_dpp v20, v20, v20 row_mirror row_mask:0xf bank_mask:0xf
    v_readlane_b32 s24, v20, 0
    v_readlane_b32 s25, v20, 16
    v_readlane_b32 s26, v20, 32
    v_readlane_b32 s27, v20, 48
    s_max_u32 s24, s24, s25
    s_max_u32 s26, s26, s27
    s_max_u32 s24, s24, s26
    s_lshr_b32 s24, s24, 23
    s_max_u32 s24, s24, 40
    s_min_u32 s24, s24, 250
    s_sub_u32 s25, 266, s24            ; A scale = 2^(12-(e-127))
    s_lshl_b32 s25, s25, 23
    s_sub_u32 s26, s24, 25             ; undo: 2 * 2^(e-127) * 2^-26
    s_lshl_b32 s26, s26, 23
    ''')
    W = {1: [24, 30], 8: [26, 32], 256: [28, 34]}
    AP = [40, 100]
    pts = sorted({a_point(s, h) for s in range(16) for h in range(2)})
    idx = {p: i for i, p in enumerate(pts)}
    assert len(pts) == 28
    for nn in range(2):
        un = (lambda d, s: f'v_lshlrev_b32 v{d}, 16, v{s}') if nn == 0 else (lambda d, s: f'v_and_b32 v{d}, 0xffff0000, v{s}')
        a(un(20, 4)); a(un(21, 5))
        a(f'v_mul_f32 v20, {fx(LOG2E)}, v20\nv_exp_f32 v20, v20')
        bf16r(a, 20, 20)
        a(f'v_mul_f32 v20, v20, v3\nv_mul_f32 v21, v21, v3')
        a(f'v_mul_f32 v20, {fx(-LOG2E)}, v20\nv_mul_f32 v21, 0.15915494, v21')
        for p in (1, 8, 256):
            w = W[p][nn]
            a(f'v_mul_f32 v22, {fx(float(p))}, v20\nv_mul_f32 v23, {fx(float(p))}, v21\nv_exp_f32 v22, v22\nv_fract_f32 v23, v23')
            a(f'v_cos_f32 v{w}, v23\nv_sin_f32 v{w+1}, v23\ns_nop 0\nv_mul_f32 v{w}, v{w}, v22\nv_mul_f32 v{w+1}, v{w+1}, v22')
        c0 = AP[nn] + 2*idx[0]
        a(un(c0, 6)); a(un(c0+1, 7))
        a(f'v_mul_f32 v{c0}, s25, v{c0}\nv_mul_f32 v{c0+1}, s25, v{c0+1}')
    def both(fn):
        x, y = fn(0), fn(1)
        for p, q in zip(x, y): a(p); a(q)
    for p in pts[1:]:
        if p <= 8: both(lambda nn: cmul(AP[nn]+2*idx[p], AP[nn]+2*idx[p-1], W[1][nn]))
        else: both(lambda nn: cmul(AP[nn]+2*idx[p], AP[nn]+2*idx[p-256], W[256][nn]))
    T0 = 160
    k = 0
    for nn in range(2):
        for comp in range(2):
            ng = '-' if comp else ''
            for u in range(4):
                t = T0 + 4*(k % 4); k += 1
                row = [a_point(4*u + (r & 3), r >> 2) for r in range(8)]
                for j in range(4):
                    a(f'v_cvt_pk_f16_f32 v{t+j}, {ng}v{AP[nn]+2*idx[row[2*j]]+comp}, {ng}v{AP[nn]+2*idx[row[2*j+1]]+comp}')
                a(f'ds_write_b128 v{8+u}, {vr(t,4)} offset:{(2*nn+comp)*8192}')
    BP = [180, 200]
    for nn in range(2): a(f'v_mov_b32 v{BP[nn]}, {fx(16384.0)}\nv_mov_b32 v{BP[nn]+1}, 0')
    for u in range(4):
        for j in range(8):
            if u == 0 and j == 0: continue
            both(lambda nn: cmul(BP[nn]+2*j, BP[nn]+2*((j-1) % 8), W[8][nn]))
        for nn in range(2):
            for comp in range(2):
                t = T0 + 4*(k % 4); k += 1
                for j in range(4):
                    a(f'v_cvt_pk_f16_f32 v{t+j}, v{BP[nn]+4*j+comp}, v{BP[nn]+4*j+2+comp}')
                a(f'ds_write_b128 v{12+u}, {vr(t,4)} offset:{(2*nn+comp)*8192}')
    a('s_waitcnt lgkmcnt(0)')
    FR, DD = 40, 180
    for half in range(2):
        for kk in range(8):
            kap = half*8 + kk; r = FR + kk*8
            a(f'ds_read_b64_tr_b16 {vr(r,2)}, v16 offset:{kap*2048}')
            a(f'ds_read_b64_tr_b16 {vr(r+2,2)}, v17 offset:{kap*2048+512}')
            a(f'ds_read_b64_tr_b16 {vr(r+4,2)}, v17 offset:{kap*2048}')
            a(f'ds_read_b64_tr_b16 {vr(r+6,2)}, v16 offset:{kap*2048+512}')
        a('s_waitcnt lgkmcnt(0)')
        for kk in range(8):
            r = FR + kk*8
            a(f'v_mfma_f32_32x32x16_f16 {vr(DD,16)}, {vr(r,4)}, {vr(r+4,4)}, {"0" if half==0 and kk==0 else vr(DD,16)}')
    a('''
    v_mul_f32 v3, s26, v3
    v_and_b32 v20, 31, v0
    v_lshlrev_b32 v20, 4, v20
    v_sub_u32 v20, 4080, v20           ; 4080 - 16 jj
    v_lshlrev_b32 v21, 3, v18
    v_sub_u32 v21, v20, v21
    v_lshlrev_b32 v22, 9, v18
    v_sub_u32 v22, v20, v22
    v_lshlrev_b32 v23, 10, v18
    v_sub_u32 v23, v20, v23
    v_and_b32 v24, 1, v0
    v_cmp_eq_u32 vcc, 1, v24
    ''')
    for s in range(15): a(f'v_mul_f32 v{DD+s}, v{DD+s}, v3')
    V = lambda s: DD+s
    a(f'v_cndmask_b32 v25, v{V(11)}, v{V(12)}, vcc\nv_cndmask_b32 v26, v{V(13)}, v{V(14)}, vcc')
    o = [40]
    def put(vals, addr, off, base):
        n = len(vals)//2; t = o[0]; o[0] += 4
        for j in range(n): a(f'v_cvt_pk_bf16_f32 v{t+j}, v{vals[2*j]}, v{vals[2*j+1]}')
        a(f'global_store_dwordx{n} v{addr}, {vr(t,n)}, s[{base}:{base+1}] offset:{off}')
    put([V(3), V(2), V(1), V(0)], 21, 8, 20); put([V(4), V(3), V(2), V(1)], 21, 8, 22)
    put([V(7), V(6), V(5), V(5)], 21, 8-512, 20); put([V(7), V(7), V(6), V(5)], 21, 8-512, 22)
    Q0, Q1, Q2 = V(8), V(9), V(10)
    put([Q2, Q2, Q1, Q1, Q1, Q0, Q0, Q0], 22, -1024, 20); put([Q2, Q2, Q2, Q1, Q1, Q1, Q0, Q0], 22, -1024, 22)
    for b in range(2):
        R0, R1, M = V(11+2*b), V(12+2*b), 25+b
        put([R1, R1, R1, M, R0, R0, R0, R0], 23, -2048-512*b, 20); put([R1, R1, R1, R1, M, R0, R0, R0], 23, -2048-512*b, 22)
    a(f'''
    v_mov_b32 v27, 0
    v_cvt_pk_bf16_f32 v28, v{V(0)}, v27
    v_cmp_eq_u32 vcc, 0, v0
    v_lshlrev_b32 v29, 2, v0
    v_add_u32 v29, 4096, v29
    v_cndmask_b32 v28, v27, v28, vcc
    s_mov_b64 exec, 0xffff
    global_store_dword v29, v27, s[20:21]
    global_store_dword v29, v28, s[22:23]
    ''')
    a.label('L_kg_end')
    a('s_endpgm')

GC0 = -2.0*math.sqrt(2.0/math.pi)*LOG2E
GC1 = GC0*0.044715
ACC, PEND, AF, XOV, TMP, HO = 16, 80, 144, 176, 208, 224
def xfrag(k, tt):
    return ar(k*16+tt*4, 4) if k < 16 else vr(XOV+(k-16)*16+tt*4, 4)

def geglu_chains(src, nfr, stores, dl=None, early=None):
    ch = []; tcount = 0
    for tt in range(4):
        ho = HO + 4*(tt & 1); cv = []
        for j in range(nfr):
            g0, u0 = src(2*j, tt), src(2*j+1, tt); mine = []
            for r in range(4):
                g, u, t = g0+r, u0+r, TMP + (tcount % 8); tcount += 1
                c = dict(ops=[(f'v_mul_f32 v{t}, v{g}, v{g}', 1), (f'v_mul_f32 v{u}, v{g}, v{u}', 1), (f'v_fma_f32 v{t}, v{t}, s32, v9', 1),
                              (f'v_mul_f32 v{g}, v{g}, v{t}', 1), (f'v_exp_f32 v{g}, v{g}', 2), (f'v_add_f32 v{g}, 1.0, v{g}', 1),
                              (f'v_rcp_f32 v{g}, v{g}', 2), (f'v_mul_f32 v{u}, v{u}, v{g}', 1)])
                if dl: c['deadline'] = dl(2*j, tt)
                if early: c['earliest'] = early(2*j+1, tt)
                ch.append(c); mine.append(len(ch)-1)
                if r & 1:
                    c2 = dict(ops=[(f'v_cvt_pk_bf16_f32 v{ho+2*j+(r>>1)}, v{u-1}, v{u}', 1, mine[-2:])])
                    if dl: c2['deadline'] = dl(2*j+1, tt)
                    ch.append(c2); cv.append(len(ch)-1)
        ch.append(dict(ops=[(stores(tt, ho), 3, cv)]))
    return ch

def gemm1_kernel(a):
    a.label('gemm1_kernel')
    a('''
    s_cmp_ge_u32 s2, 256
    s_cbranch_scc1 L_g1_end
    ''')
    stamp(a, 0)
    a('''
    s_load_dwordx2 s[70:71], s[0:1], 0
    s_load_dwordx4 s[72:75], s[0:1], 64
    s_load_dwordx2 s[76:77], s[0:1], 104
    v_lshrrev_b32 v1, 6, v0
    v_and_b32 v0, 63, v0
    v_readfirstlane_b32 s24, v1
    s_and_b32 s3, s2, 7
    s_lshr_b32 s31, s2, 3
    s_and_b32 s25, s3, 1
    s_lshl_b32 s25, s25, 3
    s_lshr_b32 s33, s31, 2
    s_add_u32 s25, s25, s33            ; m
    s_lshr_b32 s26, s3, 1
    s_lshl_b32 s26, s26, 2
    s_and_b32 s33, s31, 3
    s_add_u32 s26, s26, s33            ; ft
    s_add_u32 s27, s25, s26
    s_mul_i32 s33, s27, 57
    s_lshr_b32 s33, s33, 9
    s_mul_i32 s33, s33, 9
    s_sub_u32 s27, s27, s33
    s_mov_b32 s33, s27
    ''')
    for j in range(9):
        a(f's_lshl_b32 s{60+j}, s33, 7\ns_mul_i32 s{40+2*j}, s33, {64*9216}\ns_add_u32 s{41+2*j}, s{40+2*j}, {32*9216}')
        if j < 8: a(f's_add_u32 s33, s33, 1\ns_cmp_eq_u32 s33, 9\ns_cselect_b32 s33, 0, s33')
    a(f'''
    v_lshrrev_b32 v10, 3, v0
    v_and_b32 v11, 7, v0               ; unit
    s_lshl_b32 s33, s25, 7
    s_lshl_b32 s34, s24, 5
    s_add_u32 s33, s33, s34
    v_add_u32 v12, s33, v10
    v_mul_u32_u24 v12, 1152, v12
    v_lshl_add_u32 v12, v11, 4, v12
    v_add_u32 v13, {8*1152}, v12
    v_add_u32 v14, {16*1152}, v12
    v_add_u32 v15, {24*1152}, v12
    s_waitcnt lgkmcnt(0)
    ''')
    srd(a, 4, 70, L*D*2)
    RAW = 16
    raw = lambda j, rg: RAW + (j*4+rg)*4
    for j in range(9):
        for rg in range(4): a(f'buffer_load_dwordx4 {vr(raw(j,rg),4)}, v{12+rg}, s[4:7], s{60+j} offen')
    srd(a, 8, 72, D*F*2); srd(a, 12, 74, D*F*2+1024, -1024)
    srd(a, 16, 76, 0, WS_H); srd(a, 20, 76, T_BYTES, WS_XNT)
    a(f'''
    s_and_b32 s35, s26, 1              ; odd
    s_mul_i32 s36, s26, 576
    s_lshr_b32 s36, s36, 7             ; line L0
    s_add_u32 s37, s36, s35
    s_lshl_b32 s33, s24, 3
    v_add_u32 v1, s33, v10
    v_mul_u32_u24 v1, 9216, v1
    v_bfe_u32 v2, v0, 4, 1
    s_and_b32 s33, s24, 1
    s_lshl_b32 s33, s33, 1
    v_or_b32 v2, s33, v2
    v_lshlrev_b32 v2, 1, v2
    v_xor_b32 v2, v2, v11
    v_lshl_add_u32 v1, v2, 4, v1
    s_lshl_b32 s33, s37, 7
    v_add_u32 v1, s33, v1
    s_lshl_b32 s28, s24, 11
    ''')
    LA = 13
    def dma(k):
        return (f's_add_u32 m0, s28, {k*8192}', f'buffer_load_dwordx4 v1, s[8:11], s{40+k} offen lds ; tag=w{k}',
                f'buffer_load_dwordx4 v1, s[12:15], s{40+k} offen offset:1024 lds ; tag=w{k}')
    pro = []
    for k in range(LA): pro += list(dma(k))
    for l in pro: a(l)
    a(f'''
    v_lshrrev_b32 v208, 4, v0          ; q
    v_bfe_u32 v209, v0, 2, 2           ; rr
    v_and_b32 v210, 3, v0              ; c
    v_lshlrev_b32 v2, 11, v208
    v_lshl_add_u32 v2, v209, 7, v2
    v_lshl_add_u32 v2, v210, 3, v2
    v_and_b32 v211, 1, v208
    v_lshlrev_b32 v211, 1, v211
    v_lshrrev_b32 v212, 1, v209
    v_or_b32 v211, v211, v212          ; sw
    s_lshr_b32 s38, s24, 1             ; fh
    s_and_b32 s39, s24, 1              ; tg
    s_lshl_b32 s33, s38, 1
    v_xor_b32 v211, s33, v211
    v_lshl_add_u32 v2, v211, 5, v2
    v_xor_b32 v3, 32, v2
    v_add_u32 v4, 0x10000, v2
    v_add_u32 v5, 0x10000, v3
    v_add_u32 v6, 0x20000, v2
    v_add_u32 v7, 0x20000, v3
    s_lshl_b32 s34, s35, 1
    s_add_u32 s34, s34, s38
    s_xor_b32 s34, s34, s33
    s_lshl_b32 s58, s34, 5
    v_xor_b32 v232, s58, v2
    v_xor_b32 v233, s58, v4
    v_xor_b32 v234, s58, v6
    s_mul_i32 s33, s39, {4*144*1024}
    s_lshl_b32 s34, s38, 10
    s_add_u32 s34, s33, s34
    v_lshl_add_u32 v8, v0, 4, s34
    s_lshl_b32 s34, s38, 3
    s_add_u32 s34, s33, s34
    v_lshl_add_u32 v235, v0, 4, s34
    s_mul_i32 s59, s25, {8*144*1024}
    s_lshl_b32 s33, s37, 11
    s_add_u32 s30, s59, s33
    s_sub_u32 s30, s30, 2048
    s_mov_b32 s32, {fx(GC1)}
    v_mov_b32 v9, {fx(GC0)}
    s_mov_b32 s33, 0x3f803f80
    ''')
    stamp(a, 1)
    S, Q = 208, 212
    for rg in range(4): a(f'v_mov_b32 v{S+rg}, 0\nv_mov_b32 v{Q+rg}, 0')
    for j in range(9):
        a(f's_waitcnt vmcnt({min(63, 2*LA + 4*(8-j))})')
        for r in range(4):
            for rg in range(4):
                x = raw(j, rg)+r
                a(f'v_dot2c_f32_bf16 v{S+rg}, s33, v{x}\nv_dot2c_f32_bf16 v{Q+rg}, v{x}, v{x}')
    stamp(a, 2)
    for pat in ('quad_perm:[1,0,3,2]', 'quad_perm:[2,3,0,1]', 'row_half_mirror'):
        for r in range(8): a(f'v_add_f32_dpp v{S+r}, v{S+r}, v{S+r} {pat} row_mask:0xf bank_mask:0xf')
    for rg in range(4): a(f'v_mul_f32 v{S+rg}, {fx(1.0/D)}, v{S+rg}\nv_mul_f32 v{Q+rg}, {fx(1.0/D)}, v{Q+rg}')
    for rg in range(4): a(f'v_fma_f32 v{Q+rg}, -v{S+rg}, v{S+rg}, v{Q+rg}\nv_max_f32 v{Q+rg}, 0, v{Q+rg}')
    for rg in range(4): bf16r(a, S+rg, S+rg); bf16r(a, Q+rg, Q+rg)
    for rg in range(4): a(f'v_add_f32 v{Q+rg}, {fx(1e-5)}, v{Q+rg}'); bf16r(a, Q+rg, Q+rg)
    for rg in range(4): a(f'v_sqrt_f32 v{Q+rg}, v{Q+rg}')
    for rg in range(4): bf16r(a, Q+rg, Q+rg)
    for rg in range(4): a(f'v_rcp_f32 v{Q+rg}, v{Q+rg}')
    for rg in range(4): a(f'v_mov_b32 v{216+2*rg}, v{S+rg}\nv_mov_b32 v{224+2*rg}, v{Q+rg}')
    XS = 114688
    a(f'''
    v_lshrrev_b32 v236, 4, v0
    v_xor_b32 v237, v236, v11
    s_lshl_b32 s33, s24, 12
    s_add_u32 s33, s33, {XS}
    v_lshl_add_u32 v238, v10, 7, s33
    v_lshl_add_u32 v12, v237, 4, v238
    v_xor_b32 v13, 64, v12
    v_and_b32 v237, 15, v0             ; t
    v_lshrrev_b32 v238, 1, v237
    v_xor_b32 v238, v238, v236
    s_lshl_b32 s33, s39, 13
    s_add_u32 s33, s33, {XS}
    v_lshl_add_u32 v14, v237, 7, s33
    v_lshl_add_u32 v14, v238, 4, v14
    v_xor_b32 v15, 64, v14             ; ks=1
    ''')
    tq = 0
    for rnd in range(3):
        for jj in range(3):
            j = rnd*3 + jj
            for rg in range(4):
                ts = []
                for r in range(4): ts.append(240 + 2*(tq % 4)); tq += 1
                x0 = raw(j, rg)
                for r in range(4): a(f'v_lshlrev_b32 v{ts[r]}, 16, v{x0+r}\nv_and_b32 v{ts[r]+1}, 0xffff0000, v{x0+r}')
                for r in range(4): a(f'v_pk_add_f32 {vr(ts[r],2)}, {vr(ts[r],2)}, {vr(216+2*rg,2)} op_sel_hi:[1,0] neg_lo:[0,1] neg_hi:[0,1]')
                for r in range(4): a(f'v_cvt_pk_bf16_f32 v{x0+r}, v{ts[r]}, v{ts[r]+1}')
                for r in range(4): a(f'v_lshlrev_b32 v{ts[r]}, 16, v{x0+r}\nv_and_b32 v{ts[r]+1}, 0xffff0000, v{x0+r}')
                for r in range(4): a(f'v_pk_mul_f32 {vr(ts[r],2)}, {vr(ts[r],2)}, {vr(224+2*rg,2)} op_sel_hi:[1,0]')
                for r in range(4): a(f'v_cvt_pk_bf16_f32 v{x0+r}, v{ts[r]}, v{ts[r]+1}')
                if rnd > 0 and jj == 0 and rg == 0: a('s_waitcnt lgkmcnt(0)\ns_barrier')
                a(f'ds_write_b128 v{12+(rg&1)}, {vr(x0,4)} offset:{jj*16384 + rg*1024}')
        a('s_waitcnt lgkmcnt(0)\ns_barrier')
        for jj in range(3):
            for ks in range(2):
                for tt in range(4):
                    a(f'ds_read_b128 {xfrag((rnd*3+jj)*2+ks, tt)}, v{14+ks} offset:{jj*16384 + tt*2048}')
        if rnd == 0:
            a(f'''
            s_cmp_ge_u32 s26, 9
            s_cbranch_scc1 L_g1_noxt
            v_bfe_u32 v160, v0, 2, 2           ; rr
            v_lshl_add_u32 v161, v236, 3, v160 ; 8q + rr
            v_lshrrev_b32 v162, 1, v161
            v_and_b32 v162, 7, v162
            v_bfe_u32 v163, v0, 1, 1
            s_lshl_b32 s33, s24, 1
            v_or_b32 v163, s33, v163
            v_xor_b32 v162, v162, v163
            v_lshlrev_b32 v161, 7, v161
            v_lshl_add_u32 v161, v162, 4, v161
            v_and_b32 v163, 1, v0
            v_lshl_add_u32 v161, v163, 3, v161
            v_add_u32 v161, {XS}, v161
            v_xor_b32 v162, 32, v161
            s_lshl_b32 s33, s24, 4
            v_add_u32 v163, s33, v237
            v_lshlrev_b32 v163, 12, v163
            v_lshl_add_u32 v163, v236, 4, v163
            s_lshl_b32 s33, s27, 18
            s_lshl_b32 s34, s25, 8
            s_add_u32 s33, s33, s34
            ''')
            for i in range(4):
                a(f'ds_read_b64_tr_b16 {vr(16+4*i,2)}, v161 offset:{i*4096}\nds_read_b64_tr_b16 {vr(18+4*i,2)}, v162 offset:{i*4096+512}')
            a('s_waitcnt lgkmcnt(0)')
            for i in range(4): a(f'buffer_store_dwordx4 {vr(16+4*i,4)}, v163, s[20:23], s33 offen offset:{64*i}')
            a.label('L_g1_noxt')
    FO = [(0, 0), (1, 0), (0, 1), (1, 1)]
    def rd(k, i, half, areg=None, tagk=None):
        mat, j = FO[i]; off = k*8192 + mat*1024 + half*512
        reg = (2 + 2*(off >> 16) + j) if areg is None else areg(off >> 16)
        dst = AF + ((k & 1)*4 + i)*4 + 2*half
        return f'ds_read_b64_tr_b16 {vr(dst,2)}, v{reg} offset:{off & 0xffff} ; tag=a{k}_{i}'
    pre = [f's_waitcnt vmcnt({2*(LA-3)}) lgkmcnt(0)', 's_barrier'] + [rd(0, i, h) for i in range(4) for h in range(2)]
    pre += ['s_mov_b32 s29, 0', 's_mov_b32 s31, 128', 's_mov_b32 s34, 0', 's_waitcnt lgkmcnt(0)']
    stamp(a, 3)
    for l in pre: a(l)
    acc = lambda i, tt: ACC + (i*4+tt)*4
    pend = lambda i, tt: PEND + (i*4+tt)*4
    ms = []
    for k in range(18):
        for i in range(4):
            for tt in range(4):
                d = pend(i, tt) if k == 17 else acc(i, tt)
                ms.append(f'v_mfma_f32_16x16x32_bf16 {vr(d,4)}, {vr(AF+((k&1)*4+i)*4,4)}, {xfrag(k,tt)}, {"0" if k==0 else vr(acc(i,tt),4)}')
    g = Gaps(ms)
    for k in range(18):
        b = k*16; kn = (k+1) % 18
        if k % 3 == 2:
            g.scalar(b, f'@vm w{(k+3) % 18}', strict=True); g.scalar(b+1, 's_barrier', strict=True)
        rp = [1, 2, 4, 5, 8, 9, 12, 13]
        for i in range(4):
            for h in range(2):
                ar_ = (lambda w: 10) if (k == 17 and FO[i][1] == 0) else None
                g.vec(b+rp[2*i+h], rd(kn, i, h, ar_))
        for i in range(4):
            nk, ni = (k, i+1) if i < 3 else (kn, 0)
            g.scalar(b+4*i+3, f'@lg a{nk}_{ni}', strict=True)
        m0, d0, d1 = dma((k+LA) % 18)
        g.scalar(b+5, m0, strict=True); g.vec(b+6, d0, 3); g.vec(b+14, d1, 3)
        if k == 18-LA: g.vec(b+2, 'v_add_u32 v1, s31, v1')
        if k == 16: g.vec(b+2, 'v_xor_b32 v10, s34, v2')
    for gi, t in [(8, 's_add_u32 s29, s29, 1'), (9, 's_cmp_eq_u32 s29, 4'), (10, 's_cselect_b32 s34, s58, 0'), (12, 's_cselect_b32 s33, s35, 0'),
                  (13, 's_mul_i32 s33, s33, 640'), (14, 's_sub_u32 s31, 128, s33')]:
        g.scalar(gi, t, strict=True)
    for tt in range(1, 4): g.scalar(16+tt, f's_add_u32 s{77+tt}, s30, {tt*147456}')
    st = lambda tt, ho: f'buffer_store_dwordx4 {vr(ho,4)}, v8, s[16:19], s{30 if tt==0 else 77+tt} offen'
    ch = geglu_chains(pend, 2, st, dl=lambda i, tt: 17*16 + i*4 + tt - 1, early=lambda i, tt: max(0, i*4+tt-12))
    endg = g.fill(ch, width=5)
    print('gemm1 body: geglu ends at gap', endg, 'of', len(ms))
    assert endg <= 286
    g.scalar(286, 's_cmp_lt_u32 s29, 4', strict=True)
    body = Asm(); g.emit(body)
    bl = resolve_waits(body.lines)
    a('.p2align 6'); a.label('L_g1_loop')
    if STAMP[0]:
        a('s_memtime s[96:97]\ns_memrealtime s[98:99]\ns_add_u32 m0, s29, 4\ns_waitcnt lgkmcnt(0)\nv_writelane_b32 v254, s96, m0\nv_writelane_b32 v255, s98, m0')
    for l in bl: a(l)
    a(f's_mov_b32 s18, {H_BYTES}\ns_cbranch_scc0 L_g1_half\ns_add_u32 s30, s30, 2048\ns_branch L_g1_loop')
    a.label('L_g1_half')
    stamp(a, 8)
    a('s_add_u32 s30, s30, 2048')
    ms = []
    for k in range(18):
        for i in range(2):
            for tt in range(4):
                ms.append(f'v_mfma_f32_16x16x32_bf16 {vr(acc(i,tt),4)}, {vr(AF+((k&1)*4+i)*4,4)}, {xfrag(k,tt)}, {"0" if k==0 else vr(acc(i,tt),4)}')
    g = Gaps(ms, cap=3)
    for k in range(18):
        b = k*8
        if k % 3 == 2 and k < 17:
            g.scalar(b, f'@vm w{k+3}', strict=True); g.scalar(b, 's_barrier', strict=True)
        if k < 17:
            for i in range(2):
                for h in range(2): g.vec(b+[0, 1, 2, 4][2*i+h], rd(k+1, i, h, lambda w: 232+w))
        g.scalar(b+3, f'@lg a{k}_1', strict=True)
        if k < 17: g.scalar(b+7, f'@lg a{k+1}_0', strict=True)
        if k + LA < 18:
            m0, d0, d1 = dma(k+LA)
            g.scalar(b+2, m0, strict=True); g.vec(b+3, d0, 3); g.vec(b+6, d1, 3)
    for tt in range(1, 4): g.scalar(3+tt, f's_add_u32 s{77+tt}, s30, {tt*147456}')
    ch = geglu_chains(pend, 2, st, early=lambda i, tt: max(0, i*4+tt-12))
    npad = 40
    g.m += ['s_nop 0']*npad; g.s += [[] for _ in range(npad)]; g.v += [[] for _ in range(npad)]; g.used += [0]*npad
    endg = g.fill(ch, width=5)
    print('gemm1 half: geglu ends at gap', endg, 'of', len(ms))
    n = max(endg, len(ms)); g.m = g.m[:n]
    body2 = Asm(); g.emit(body2)
    for l in resolve_waits(body2.lines, prev=body.lines): a(l)
    stamp(a, 9)
    a(f'''
    s_cmp_eq_u32 s35, 1
    s_cselect_b32 s33, 1, 8
    s_lshl_b32 s34, s36, 1
    s_add_u32 s33, s33, s34
    s_lshl_b32 s33, s33, 10
    s_add_u32 s30, s59, s33
    ''')
    for tt in range(1, 4): a(f's_add_u32 s{77+tt}, s30, {tt*147456}')
    st2 = lambda tt, ho: f'buffer_store_dwordx2 {vr(ho,2)}, v235, s[16:19], s{30 if tt==0 else 77+tt} offen'
    ch = geglu_chains(acc, 1, st2)
    g = Gaps(['']*200, cap=3); endg = g.fill(ch, width=5); g.m = g.m[:endg]
    g.emit(a)
    stamp(a, 10)
    stamp_out(a, 1, 76)
    a.label('L_g1_end')
    a('s_endpgm')

def kd(name, nv, acc_off, ns=100):
    return f'''.amdhsa_kernel {name}
  .amdhsa_next_free_vgpr {nv}
  .amdhsa_next_free_sgpr {ns}
  .amdhsa_accum_offset {acc_off}
  .amdhsa_group_segment_fixed_size 0
  .amdhsa_kernarg_size 112
  .amdhsa_user_sgpr_count 2
  .amdhsa_user_sgpr_kernarg_segment_ptr 1
  .amdhsa_system_sgpr_workgroup_id_x 1
.end_amdhsa_kernel
'''

def build(kernels, launches, path, verbose=False):
    hdr = open(f'cdna_kernels/{NAME}.s.ref').read().split('; Override launch')[0]
    s = hdr + ''.join(f'; @launch kernel={k} grid=({g},1,1) block=({b},1,1) lds={l}\n' for k, g, b, l in launches)
    s += '.amdgcn_target "amdgcn-amd-amdhsa--gfx950"\n.text\n'
    for name, fn, nv, ao in kernels:
        a = Asm(); fn(a)
        a.lines, n = fix_hazards(a.lines, verbose)
        print(name, 'instructions', len(a.lines), 'nops added', n)
        s += f'.globl {name}\n.p2align 8\n.type {name},@function\n' + a.text()
    s += '.section .rodata,"a"\n'
    for name, fn, nv, ao in kernels: s += '.p2align 6\n' + kd(name, nv, ao)
    open(path, 'w').write(s)

if __name__ == "__main__":
    import gen2
    gen2.main(sys.argv[1:])
```

```python
from common5 import *
KG, KH, KC = 2176, 192, 5120
TB, EX, UB, US, RB = 0, 49152, 57344, 18432, 112640

def apoint(sig, hh):
    if sig >= 9: return 512 + 256*hh + 4*(sig-9)
    if hh == 0: return sig
    return 256 + sig if sig % 2 == 0 else 1032 + 256*(sig >> 1)

def lane_table():
    rows = []
    for lane in range(64):
        r = []
        for i in range(3):
            w, u = divmod(64*i + lane, 6); c = (w >> 1) & 3; g = 2*((w >> 3) & 1) + (w & 1); par = w >> 4
            r.append(2*(1024-192) + 2048 - 1024*i - 512*g - 64*par + 16*u + KG*(c & 1) + 2*(c + (c & 1)))
        for i in range(2):
            n = 64*i + lane
            if n < 80: w, u = divmod(n, 10); c = w >> 1; base = 2*KG + 2*KH*(w & 1) + KH*(c & 1)
            else: c, u = divmod(n-80, 12); u = min(u, 5); base = KG*(c & 1)
            r.append(base + 16*u + 2*(c + (c & 1)) + 2048 - 1024*i)
        q, t = lane >> 4, lane & 15; c = 3 - (lane & 3)
        rt = 192*c + 16*q - 8*(t >> 2) + 24
        r += [576*256*q + 16*t, 16*lane, rt, 320*c + 8*q - 8*(t >> 2) + 24, 32*t + 16*q, 32*t + 8*q, rt + 1280]
        for hw in (3, 4):
            for j in range(4): r.append(sum(0x3f80 << (16*e) for e in range(2) if abs(8*q + 2*j + e - t - 8) <= hw))
        rows.append(r)
    return [rows[lane][4*b + j] for b in range(5) for lane in range(64) for j in range(4)]

def v_role(a):
    P, PN = 88, 94
    WA, RA = 104, 100
    W1, W8, W256 = 114, 116, 118
    AP, BP, T0, DD = 120, 176, 192, 176
    DT, HH, T1 = 208, 209, 210
    VSIG, VONE, DUM, VPW, VPD = 216, 217, 218, 219, 220
    O1, O2, O3, O4, MR, MK = 221, 222, 223, 224, 225, 226
    def params(dst):
        a(f's_lshl_b32 s33, s40, 8\nv_lshl_add_u32 v2, v0, 2, s33\ns_lshl_b32 s33, s40, 1\nv_mov_b32 v3, s33')
        for q in range(4): a(f'global_load_dword v{dst+q}, v2, s[{8+2*q}:{9+2*q}]')
        a(f'global_load_ushort v{dst+4}, v3, s[16:17]')
    a(f'''
    s_lshl_b32 s26, s25, 1
    s_lshr_b32 s33, s81, 1
    s_add_u32 s26, s26, s33            ; v
    s_mul_i32 s33, s26, 18
    s_add_u32 s41, s33, s24
    s_lshr_b32 s34, s24, 1
    s_add_u32 s42, s33, s34
    s_add_u32 s42, s42, 16
    s_mov_b32 s40, s41
    ''')
    params(PN)
    a('v_lshlrev_b32 v2, 4, v0\nv_add_u32 v2, vlane_tab-L_pc+2048, v2')
    for b in range(5): a(f'global_load_dwordx4 {vr(228+4*b,4)}, v2, s[68:69] offset:{1024*b-2048}')
    for i in range(5):
        a(f's_add_u32 s33, s41, {4*i}' if i < 4 else 's_mov_b32 s33, s42')
        a(f's_lshl_b32 s33, s33, 1\ns_and_b32 s33, s33, 0xfffc\ns_load_dword s{60+i}, s[18:19], s33')
    a('s_mov_b32 s76, s94\ns_mov_b32 s77, s95\ns_and_b32 s39, s24, 1\ns_cmp_eq_u32 s39, 0\ns_cselect_b32 s4, s72, s74\ns_cselect_b32 s5, s73, s75')
    a(f's_mov_b32 s6, {D*F*2}\ns_mov_b32 s7, 0x20000\ns_mov_b32 s86, 0\ns_mov_b32 s87, 0x20000')
    srd(a, 20, 76, WS_SIZE)
    a(f'''
    v_min_u32 v4, 53, v0
    v_mul_u32_u24 v5, 43, v4
    v_lshrrev_b32 v5, 8, v5            ; row
    v_mul_u32_u24 v6, 6, v5
    v_sub_u32 v6, v4, v6
    v_mul_u32_u24 v7, 86, v6
    v_lshrrev_b32 v7, 8, v7
    v_mul_u32_u24 v8, 3, v7
    v_sub_u32 v6, v6, v8
    v_mul_u32_u24 v5, 9216, v5
    v_mul_u32_u24 v7, {18*128}, v7
    v_add_u32 v5, v5, v7
    v_lshl_add_u32 v7, v6, 7, v5
    s_lshl_b32 s33, s26, 2
    s_add_u32 s33, s33, s24
    s_mul_i32 s45, s33, {5*128}
    s_lshr_b32 s33, s33, 1
    s_mul_i32 s43, s33, {9*9216}
    s_add_u32 s33, s43, {36*128}
    ''')
    PFM = OPT.get('pf', 5)
    if PFM == 1: a(f'buffer_load_dword v{DUM}, v7, s[4:7], s43 offen offset:{15*128}\nbuffer_load_dword v{DUM}, v7, s[4:7], s33 offen offset:{15*128}')
    a(f'''
    v_mul_u32_u24 v6, 640, v6
    v_add_u32 v{VPW}, v5, v6
    {f'v_mul_u32_u24 v{VPD}, {648*128}, v0' if PFM != 3 else f'v_mov_b32 v{VPD}, v7'}
    {'s_mov_b32 s45, s43' if PFM == 3 else ''}
    v_mov_b32 v227, v7
    s_mov_b32 s37, s43
    s_mov_b32 s44, {36*128}
    s_mov_b32 s46, 0
    v_mov_b32 v{VONE}, 1
    v_mov_b32 v{VSIG}, {OOB}
    s_cmp_eq_u32 s24, 0
    s_cselect_b32 s33, 0, {OOB}
    v_writelane_b32 v{VSIG}, s33, 0
    s_lshl_b32 s36, s26, 7
    s_add_u32 s36, s36, {WS_FLG+0x10000}
    v_mov_b32 v4, 0
    buffer_store_dword v4, v{VSIG}, s[20:23], s36 offen sc1
    s_mov_b32 s68, s92
    s_mov_b32 s69, s93
    s_and_b32 s33, s2, 7
    s_lshl_b32 s33, s33, 5
    s_add_u32 s92, s92, s33
    s_addc_u32 s93, s93, 0
    s_mov_b32 s94, 4
    s_mov_b32 s95, 0x20000
    s_mov_b32 s3, 0xffff0000
    ''')
    a(f'v_mov_b32 v9, {OOB}')
    def prefetch():
        if not PFM: return
        if PFM >= 3:
            a(f'''
            buffer_load_dword v{DUM}, v{VPW}, s[4:7], s43 offen offset:128
            s_add_u32 s43, s43, s44
            s_sub_u32 s44, 128, s44
            s_add_u32 s46, s46, 1
            s_cmp_ge_u32 s46, 8
            s_cselect_b32 s6, 0, s6
            ''')
            return
        if PFM == 2:
            a(f'''
            buffer_load_dword v{DUM}, v{VPD}, s[84:87], s45 offen
            s_add_u32 s45, s45, 128
            s_add_u32 s46, s46, 1
            s_cmp_ge_u32 s46, 5
            s_cselect_b32 s86, 0, s86
            ''')
            return
        a(f'''
        buffer_load_dword v{DUM}, v{VPW}, s[4:7], s43 offen offset:128
        buffer_load_dword v{DUM}, v{VPD}, s[84:87], s45 offen
        s_add_u32 s43, s43, s44
        s_sub_u32 s44, 128, s44
        s_add_u32 s46, s46, 1
        s_cmp_gt_u32 s46, 8
        s_cselect_b32 s33, 128, 0
        s_add_u32 s45, s45, s33
        s_cmp_ge_u32 s46, 8
        s_cselect_b32 s6, 0, s6
        s_cselect_b32 s86, {D*F*2}, 0
        s_cmp_ge_u32 s46, 13
        s_cselect_b32 s86, 0, s86
        ''')
    NPF = [0, 2, 1, 1, 1, 1][PFM]
    if PFM == 1: prefetch()
    if PFM in (2, 4, 5): a(f's_mov_b32 s86, {D*F*2}')
    if PFM == 5: a(f'buffer_load_dword v{DUM}, v{VPD}, s[84:87], s45 offen offset:512')
    pts = sorted({apoint(s, h) for s in range(12) for h in range(2)}); idx = {p: i for i, p in enumerate(pts)}
    assert len(pts) == 24
    a(f'''
    s_lshl_b32 s34, s24, 15
    v_and_b32 v{T1}, 1, v0
    v_bfe_u32 v{T1+1}, v0, 2, 1
    v_lshl_or_b32 v{T1}, v{T1+1}, 1, v{T1}
    v_bfe_u32 v{T1+1}, v0, 1, 1
    v_lshl_or_b32 v{T1}, v{T1+1}, 2, v{T1}
    v_lshl_add_u32 v{T1+1}, v0, 7, s34
    ''')
    WU = [0, 1, 2, 4, 5, 6, 7]
    for u in WU: a(f'v_xor_b32 v{WA+u}, {u}, v{T1}\nv_lshl_add_u32 v{WA+u}, v{WA+u}, 4, v{T1+1}')
    a(f'''
    v_lshrrev_b32 v{HH}, 5, v0
    v_bfe_u32 v{T1+1}, v0, 2, 2
    v_lshl_add_u32 v{RA}, v{HH}, 3, v{T1+1}
    v_lshl_add_u32 v{RA}, v{RA}, 7, s34
    v_bfe_u32 v{T1+2}, v0, 4, 1
    v_bfe_u32 v{T1+3}, v0, 1, 1
    v_lshl_add_u32 v{T1+2}, v{T1+2}, 1, v{T1+3}
    v_bfe_u32 v{T1+1}, v0, 2, 1
    v_bfe_u32 v{T1+3}, v0, 3, 1
    v_lshl_or_b32 v{T1+1}, v{T1+3}, 2, v{T1+1}
    v_xor_b32 v{T1+2}, v{T1+2}, v{T1+1}
    v_lshl_add_u32 v{RA}, v{T1+2}, 4, v{RA}
    v_and_b32 v{T1+2}, 1, v0
    v_lshl_add_u32 v{RA}, v{T1+2}, 3, v{RA}
    v_xor_b32 v{RA+1}, 32, v{RA}
    v_xor_b32 v{RA+2}, 64, v{RA}
    v_xor_b32 v{RA+3}, 96, v{RA}
    v_lshlrev_b32 v{O1}, 4, v0
    v_sub_u32 v{O1}, {2096-1024}, v{O1}
    v_mul_u32_u24 v{O2}, {2*KH}, v{T1+2}
    v_and_b32 v{T1}, 30, v0
    v_lshl_add_u32 v{T1}, v{HH}, 6, v{T1}
    v_sub_u32 v{O2}, v{O2}, v{T1}
    v_add_u32 v{O2}, {2*KG + 126 - 32}, v{O2}
    v_and_b32 v{T1}, 15, v0
    v_lshrrev_b32 v{T1+1}, 4, v0
    v_mul_u32_u24 v{O3}, {KH}, v{T1+1}
    v_lshl_add_u32 v{O3}, v{T1}, 2, v{O3}
    v_add_u32 v{O3}, {2*KG+128}, v{O3}
    v_mul_u32_u24 v{O4}, {KG}, v{HH}
    v_and_b32 v{T1+1}, 1, v{T1+1}
    v_mul_u32_u24 v{T1+1}, 2112, v{T1+1}
    v_add_u32 v{O4}, v{O4}, v{T1+1}
    v_lshl_add_u32 v{O4}, v{T1}, 2, v{O4}
    v_mov_b32 v{MR}, 0
    v_mov_b32 v{MK}, 0
    v_writelane_b32 v{MR}, s3, 13
    v_writelane_b32 v{MR}, -1, 14
    v_writelane_b32 v{MR}, -1, 15
    v_writelane_b32 v{MR}, -1, 46
    v_writelane_b32 v{MR}, -1, 47
    s_mov_b32 s33, 0xffff
    v_writelane_b32 v{MK}, s33, 48
    s_mov_b32 s47, 0
    s_mov_b32 s48, 16
    s_mov_b64 s[50:51], 0
    s_mov_b32 s51, -1
    s_waitcnt vmcnt({ {1: 10, 5: 7}.get(PFM, 6) }) lgkmcnt(0)
    ''')
    stamp(a, 1)
    a.label('L_kg_loop')
    for i in range(5): a(f'v_mov_b32 v{P+i}, v{PN+i}')
    a(f'''
    s_mul_i32 s49, s40, {KC}
    s_add_u32 s49, s49, {WS_KV}
    s_add_u32 s40, s40, 4
    s_cmp_ge_u32 s47, 6
    s_cselect_b32 s40, s42, s40
    ''')
    params(PN)
    a(f'''
    v_lshlrev_b32 v{DT}, 16, v{P+4}
    v_and_b32 v{T1}, 0x7fff7fff, v{P+2}
    v_and_b32 v{T1+1}, 0x7fff7fff, v{P+3}
    v_mul_f32 v{DT}, {fx(LOG2E)}, v{DT}
    v_pk_max_u16 v{T1}, v{T1}, v{T1+1}
    v_exp_f32 v{DT}, v{DT}
    v_lshlrev_b32 v{T1+1}, 16, v{T1}
    v_max_u32 v{T1}, v{T1}, v{T1+1}
    v_cvt_pk_bf16_f32 v{DT}, v{DT}, v{DT}
    v_and_b32 v{DT}, s3, v{DT}
    v_max_u32_dpp v{T1}, v{T1}, v{T1} quad_perm:[1,0,3,2] row_mask:0xf bank_mask:0xf
    v_max_u32_dpp v{T1}, v{T1}, v{T1} quad_perm:[2,3,0,1] row_mask:0xf bank_mask:0xf
    v_max_u32_dpp v{T1}, v{T1}, v{T1} row_half_mirror row_mask:0xf bank_mask:0xf
    v_max_u32_dpp v{T1}, v{T1}, v{T1} row_mirror row_mask:0xf bank_mask:0xf
    v_readlane_b32 s33, v{T1}, 0
    v_readlane_b32 s34, v{T1}, 16
    v_readlane_b32 s78, v{T1}, 32
    v_readlane_b32 s79, v{T1}, 48
    s_max_u32 s33, s33, s34
    s_max_u32 s78, s78, s79
    s_max_u32 s33, s33, s78
    s_lshr_b32 s33, s33, 23
    s_max_u32 s33, s33, 40
    s_min_u32 s33, s33, 250
    s_sub_u32 s78, 266, s33
    s_lshl_b32 s78, s78, 23
    s_sub_u32 s79, s33, 25
    s_lshl_b32 s79, s79, 23
    ''')
    a.label('L_kg_half')
    if STAMP[0]: a('s_memtime s[96:97]\ns_memrealtime s[98:99]\ns_add_u32 m0, s47, 16\ns_waitcnt lgkmcnt(0)\nv_writelane_b32 v254, s96, m0\nv_writelane_b32 v255, s98, m0')
    prefetch()
    a(f'''
    v_lshlrev_b32 v{T1+2}, s48, v{P}
    v_lshlrev_b32 v{T1+3}, s48, v{P+1}
    v_and_b32 v{T1+2}, s3, v{T1+2}
    v_and_b32 v{T1+3}, s3, v{T1+3}
    v_mul_f32 v{T1+2}, {fx(LOG2E)}, v{T1+2}
    v_mul_f32 v{T1+3}, v{T1+3}, v{DT}
    v_exp_f32 v{T1+2}, v{T1+2}
    v_mul_f32 v{T1+3}, 0.15915494, v{T1+3}
    v_cvt_pk_bf16_f32 v{T1+2}, v{T1+2}, v{T1+2}
    v_and_b32 v{T1+2}, s3, v{T1+2}
    v_mul_f32 v{T1+2}, v{T1+2}, v{DT}
    v_mul_f32 v{T1+2}, {fx(-LOG2E)}, v{T1+2}
    ''')
    for p, w in ((1, W1), (8, W8), (256, W256)):
        if p == 1: a(f'v_exp_f32 v{T1}, v{T1+2}\nv_fract_f32 v{T1+1}, v{T1+3}')
        else: a(f'v_mul_f32 v{T1}, {fx(float(p))}, v{T1+2}\nv_mul_f32 v{T1+1}, {fx(float(p))}, v{T1+3}\nv_exp_f32 v{T1}, v{T1}\nv_fract_f32 v{T1+1}, v{T1+1}')
        a(f'v_cos_f32 v{w}, v{T1+1}\nv_sin_f32 v{w+1}, v{T1+1}\nv_mul_f32 v{w}, v{w}, v{T1}\nv_mul_f32 v{w+1}, v{w+1}, v{T1}')
    c0 = AP + 2*idx[0]
    a(f'v_lshlrev_b32 v{c0}, s48, v{P+2}\nv_lshlrev_b32 v{c0+1}, s48, v{P+3}\nv_and_b32 v{c0}, s3, v{c0}\nv_and_b32 v{c0+1}, s3, v{c0+1}')
    a(f'v_mul_f32 v{c0}, s78, v{c0}\nv_mul_f32 v{c0+1}, s78, v{c0+1}\nv_mov_b32 v{BP}, {fx(16384.0)}\nv_mov_b32 v{BP+1}, 0')
    k = [0]
    def out(vals, ng, u, comp):
        t = T0 + 4*(k[0] % 4); k[0] += 1
        return [f'v_cvt_pk_f16_f32 v{t+j}, {ng}v{vals[2*j]}, {ng}v{vals[2*j+1]}' for j in range(4)], f'ds_write_b128 v{WA+u}, {vr(t,4)} offset:{comp*8192}'
    achain = []
    for p in pts[1:]: achain.append(cmul(AP+2*idx[p], AP+2*idx[p-1], W1) if p <= 8 else cmul(AP+2*idx[p], AP+2*idx[p-256], W256))
    aouts = [(u, comp) for u in range(3) for comp in range(2)]
    pendw = None
    for u in range(4):
        if u == OPT.get('pfu', 1) and PFM == 4:
            a(f'''
            s_and_b32 s33, s47, 13
            s_cbranch_scc1 L_kg_pfd
            buffer_load_dword v{DUM}, v227, s[4:7], s37 offen offset:{15*128}
            s_add_u32 s37, s37, {36*128}
            s_branch L_kg_nopf
            L_kg_pfd:
            s_cmp_ge_u32 s47, 7
            s_cbranch_scc1 L_kg_nopf
            buffer_load_dword v{DUM}, v{VPD}, s[84:87], s45 offen
            s_add_u32 s45, s45, 128
            L_kg_nopf:
            ''')
        if u == OPT.get('pfu', 1) and PFM == 5:
            a(f's_lshr_b32 s33, {OPT.get("pfmask", 0x1d)}, s47\ns_bitcmp1_b32 s33, 0\ns_cbranch_scc0 L_kg_nopf\nbuffer_load_dword v{DUM}, v{VPD}, s[84:87], s45 offen\ns_add_u32 s45, s45, 128'); a.label('L_kg_nopf')
        if u == 2 and PFM == 3:
            a(f's_and_b32 s33, s47, 13\ns_cbranch_scc1 L_kg_nopf\nbuffer_load_dword v{DUM}, v{VPD}, s[4:7], s45 offen offset:{15*128}\ns_add_u32 s45, s45, {36*128}'); a.label('L_kg_nopf')
        if u == 2 and PFM == 1:
            a('s_bitcmp1_b32 s47, 0\ns_cbranch_scc1 L_kg_nopf'); prefetch(); a.label('L_kg_nopf')
        for j in range(8):
            if j == 3 and pendw: a(pendw); pendw = None
            if u >= 2 and j in (1, 5, 7):
                uu, comp = aouts.pop(0)
                cv, w = out([AP+2*idx[apoint(4*uu + (r & 3), r >> 2)]+comp for r in range(8)], '-' if comp else '', uu, comp)
                for l in cv: a(l)
                a(w)
            if u < 2:
                for n in range(2 if j % 2 else 1):
                    if achain:
                        for l in achain.pop(0): a(l)
            if u == 0 and j == 0: continue
            for l in cmul(BP+2*j, BP+2*((j-1) % 8), W8): a(l)
        for comp in range(2):
            cv, w = out([BP+2*j+comp for j in range(8)], '', 4+u, comp)
            for l in cv: a(l)
            if comp == 0: a(w)
            else: pendw = w
    assert not achain and not aouts
    a(f's_add_u32 s47, s47, 1\ns_xor_b32 s48, s48, 16')
    a(pendw)
    for u in WU: a(f'v_xor_b32 v{WA+u}, 0x4000, v{WA+u}')
    a(f'''
    s_cmp_eq_u32 s47, 9
    s_cbranch_scc1 L_kg_sync
    s_bitcmp1_b32 s47, 0
    s_cbranch_scc0 L_kg_fin
    s_cmp_eq_u32 s47, 7
    s_cbranch_scc0 L_kg_half
    v_and_b32 v4, 7, v0
    v_lshlrev_b32 v4, 5, v4
    global_load_dword v5, v4, s[68:69] sc1
    s_branch L_kg_half
    ''')
    a.label('L_kg_sync')
    a('s_waitcnt lgkmcnt(0)\ns_barrier')
    a.label('L_kg_fin')
    XF_LD = 'buffer_load_dwordx3 v[6:8], v9, s[20:23], s31 offen sc1'
    a(f'''
    s_cmp_eq_u32 s47, 8
    s_cbranch_scc0 L_kg_fin2
    s_waitcnt vmcnt({NPF})
    v_cmp_gt_u32 vcc, 32, v5
    v_lshlrev_b32 v9, 7, v0
    s_mov_b32 s31, {WS_FLG+0x8000}
    s_cbranch_vccnz L_v_sp0
    ''')
    a.label('L_v_bk0')
    a(XF_LD)
    a.label('L_kg_fin2')
    if STAMP[0]: a('s_memtime s[96:97]\ns_memrealtime s[98:99]\ns_add_u32 s33, s47, 1\ns_lshr_b32 s33, s33, 1\ns_add_u32 m0, s33, 24\ns_waitcnt lgkmcnt(0)\nv_writelane_b32 v254, s96, m0\nv_writelane_b32 v255, s98, m0')
    a('s_waitcnt lgkmcnt(0)')
    rds = []
    for kap in range(16):
        r = kap*8
        rds += [f'ds_read_b64_tr_b16 {ar(r,2)}, v{RA} offset:{kap*2048}', f'ds_read_b64_tr_b16 {ar(r+2,2)}, v{RA+1} offset:{kap*2048+512}',
                f'ds_read_b64_tr_b16 {ar(r+4,2)}, v{RA+2} offset:{kap*2048}', f'ds_read_b64_tr_b16 {ar(r+6,2)}, v{RA+3} offset:{kap*2048+512}']
    for l in rds[:12]: a(l)
    a(f'v_mov_b32 v{T1}, 0\nv_mul_f32 v{DT}, s79, v{DT}\nv_mul_f32 v{DT}, {fx(LAM**-3)}, v{DT}')
    for kap in range(16):
        a(f's_waitcnt lgkmcnt({min(8, 4*(15-kap))})')
        a(f'v_mfma_f32_32x32x16_f16 {vr(DD,16)}, {ar(kap*8,4)}, {ar(kap*8+4,4)}, {"0" if kap==0 else vr(DD,16)}')
        for l in rds[12+4*kap:16+4*kap]: a(l)
        if kap == 13: a(f'buffer_store_dword v{T1}, v{O3}, s[20:23], s49 offen')
    a('s_nop 7')
    for s in range(0, 12, 2): a(f'v_pk_mul_f32 {vr(DD+s,2)}, {vr(DD+s,2)}, {vr(DT,2)} op_sel_hi:[1,0]')
    V = lambda s: DD+s
    a(f'''
    v_cvt_pk_bf16_f32 v{T1+1}, v{V(1)}, v{V(3)}
    v_cvt_pk_bf16_f32 v{T1+2}, v{V(5)}, v{V(7)}
    v_cvt_pk_bf16_f32 v{T1+3}, v{V(11)}, v{V(11)}
    v_cvt_pk_bf16_f32 v{T1+4}, v{V(0)}, v{V(0)}
    v_permlane32_swap_b32 v{T1+1}, v{T1+2}
    v_readlane_b32 s33, v{T1+3}, 63
    v_readlane_b32 s34, v{T1+4}, 0
    v_cndmask_b32 v{V(1)}, v{V(1)}, v{V(0)}, s[50:51]
    v_cndmask_b32 v{V(3)}, v{V(3)}, v{V(4)}, s[50:51]
    v_cndmask_b32 v{V(5)}, v{V(5)}, v{V(4)}, s[50:51]
    v_cndmask_b32 v{V(7)}, v{V(7)}, v{V(8)}, s[50:51]
    v_and_b32 v{T1+3}, s33, v{MR}
    v_and_or_b32 v{T1+3}, s34, v{MK}, v{T1+3}
    ''')
    small = [f'buffer_store_short v{T1+2}, v{O2}, s[20:23], s49 offen offset:32', f'buffer_store_short_d16_hi v{T1+2}, v{O2}, s[20:23], s49 offen',
             f'buffer_store_short v{T1+2}, v{O2}, s[20:23], s49 offen offset:{32+KH+2}', f'buffer_store_short_d16_hi v{T1+2}, v{O2}, s[20:23], s49 offen offset:{KH+2}',
             f'buffer_store_dword v{T1+3}, v{O4}, s[20:23], s49 offen']
    Q0, Q1, Q2 = V(9), V(10), V(11)
    big = [([V(7-e) for e in range(8)], 1024), ([V(8-e) for e in range(8)], 1024+KG), ([Q2, Q2, Q1, Q1, Q1, Q0, Q0, Q0], 0), ([Q2, Q2, Q2, Q1, Q1, Q1, Q0, Q0], KG)]
    a(small.pop())
    for n, (vals, off) in enumerate(big):
        t = AP + 4*n
        for j in range(4):
            a(f'v_cvt_pk_bf16_f32 v{t+j}, v{vals[2*j]}, v{vals[2*j+1]}')
            if j == 1: a(small.pop())
        a(f'buffer_store_dwordx4 {vr(t,4)}, v{O1}, s[20:23], s49 offen offset:{off}')
    a(f'''
    s_cmp_eq_u32 s47, 9
    s_cbranch_scc1 L_kg_done
    s_waitcnt vmcnt(10)
    buffer_atomic_add v{VONE}, v{VSIG}, s[92:95], 0 offen
    s_mov_b32 s94, 0
    s_cmp_eq_u32 s47, 8
    s_cbranch_scc0 L_kg_loop
    ''')
    VT0, VEX, VU, VL16 = 228, 231, 233, 234
    RT, RK, RUB, REB = 235, 236, 237, 238
    a(f'''
    v_min3_u32 v6, v6, v7, v8
    v_cmp_gt_u32 vcc, 1, v6
    s_lshl_b32 s48, s39, 4
    s_xor_b32 s48, s48, 16
    s_lshr_b32 s33, s24, 1
    s_sub_u32 s33, s33, s24
    s_add_u32 s33, s33, 3
    s_lshl_b32 s33, s33, 15
    s_lshl_b32 s34, s39, 14
    s_add_u32 s34, s34, s33
    s_cbranch_vccnz L_v_sp1
    ''')
    a.label('L_v_bk1')
    for u in WU: a(f'v_add_u32 v{WA+u}, s34, v{WA+u}')
    for u in range(4): a(f'v_add_u32 v{RA+u}, s33, v{RA+u}')
    a(f'''
    s_mul_i32 s52, s24, 3072
    s_lshl_b32 s53, s24, 11
    s_add_u32 s53, s53, {EX}
    v_add_u32 v239, s53, v239
    v_add_u32 v{RT}, s52, v{RT}
    v_add_u32 v{RK}, s53, v{RK}
    s_mul_i32 s54, s24, 4608
    s_add_u32 s54, s54, {UB}
    s_add_u32 s55, s54, {US}           ; next
    s_add_u32 s56, s55, {US}           ; previous
    s_mul_i32 s57, s41, {KC}
    s_add_u32 s57, s57, {WS_KV-2048}
    s_lshl_b32 s58, s41, 8
    s_add_u32 s58, s58, {WS_XNT}
    s_barrier
    ''')
    def tdma(pr, so): return [f's_add_u32 m0, s52, {TB+pr*12288}', f's_add_u32 s34, s{so}, {(3-pr)*128}'], [f'buffer_load_dwordx4 v{VT0+i}, s[20:23], s34 offen offset:{i*1024} lds ; tag=t{pr}' for i in range(3)]
    def exdma(so): return ['s_mov_b32 m0, s53'], [f'buffer_load_dwordx4 v{VEX+i}, s[20:23], s{so} offen offset:{i*1024} lds ; tag=ex' for i in range(2)]
    ustep = f's_add_u32 s58, s58, {4*576*256-1024}'
    def udma(buf): return f's_add_u32 m0, s{buf}, 512', [f'buffer_load_dwordx4 v{VU}, s[20:23], s58 offen offset:{j*1024} sc1 lds ; tag=u' for j in range(4)]
    m, ld = udma(54); a(m)
    for j in range(4):
        a(ld[j])
        if j < 3: a(ustep)
    for pr in range(4):
        sc, ld = tdma(pr, 57)
        for l in sc + ld: a(l)
    sc, ld = exdma(57)
    for l in sc + ld: a(l)
    BAND = 240
    a('v_mov_b32 v10, 0\nv_mov_b32 v11, 0\nv_lshl_add_u32 v7, v0, 3, s54')
    a(f'ds_write_b64 v7, v[10:11]\nds_write_b64 v7, v[10:11] offset:{US}')
    a('s_branch L_kg_loop')
    a.label('L_kg_done')
    stamp(a, 2)
    CA, CP, WD, WF, E0, TM, OU, SR = 32, 64, 96, 128, 152, 168, 184, 192
    VUC, VUN, VEP, VLP = 12, 13, 14, 15
    KP = [116, 128]
    tf = lambda s, g: ((s & 1)*48 + g*4)
    uf = lambda s, k: ar((s & 1)*48 + 16 + k*4, 4)
    def reads(s, ureg):
        out = []; d = s % 8
        for j in range(8):
            out.append(f'ds_read_b128 {uf(s,j)}, v{ureg} offset:{512 + 512*j - 64*d - 32}')
            g = j >> 1; off = TB + (d >> 1)*12288 + (2*(d & 1) + (g >> 1))*768 + (g & 1)*96 + 8*(j & 1)
            out.append(f'ds_read_b64 {ar(tf(s,g)+2*(j&1),2)}, v{RT} offset:{off}')
        return out
    for i in range(5): a(f's_and_b32 s33, s{41 if i < 4 else 42}, 1\ns_lshl_b32 s33, s33, 4\ns_lshr_b32 s{60+i}, s{60+i}, s33\ns_lshl_b32 s{60+i}, s{60+i}, 16')
    a(f'v_mov_b32 v4, {fx(LAM**-3)}')
    for i in range(5): a(f'v_mul_f32 v{5+i}, s{60+i}, v4')
    for i in range(5): a(f'v_readfirstlane_b32 s{60+i}, v{5+i}')
    a(f'''
    v_add_u32 v{VUN}, s54, v{RUB}
    v_mov_b32 v10, 0
    v_mov_b32 v11, 0
    v_lshl_add_u32 v7, v0, 3, s56
    s_mov_b32 s29, 0
    s_mov_b32 s65, 0
    s_mov_b32 s66, {OOB}
    s_mov_b32 s40, s41
    s_waitcnt vmcnt(10)
    s_barrier
    ds_write_b64 v7, v[10:11]
    ''')
    for l in reads(0, VUN): a(l)
    for f in range(2): a(f'v_accvgpr_write_b32 a{KP[f]+8}, 0\nv_accvgpr_write_b32 a{KP[f]+9}, 0')
    a('s_waitcnt lgkmcnt(0)')
    ms = []; sb = []
    for s in range(8):
        sb.append(len(ms))
        order = [(g_, k) for g_ in range(4) for k in range(8-g_)]
        for n, (g_, k) in enumerate(order):
            nt = g_+k; c = vr(CA+nt*4, 4)
            first = s == 0 and g_ == 0
            last = s == 7 and not any(g2+k2 == nt for g2, k2 in order[n+1:])
            ms.append(f'v_mfma_f32_16x16x32_bf16 {vr(CP+nt*4,4) if last else c}, {ar(tf(s,g_),4)}, {uf(s,k)}, {"0" if first else c}')
        if s == 0:
            for k in range(4): ms.append(f'v_mfma_f32_16x16x32_bf16 {vr(WD+4*k,4)}, {uf(0,k)}, {vr(BAND,4)}, 0')
            for k in range(4): ms.append(f'v_mfma_f32_16x16x32_bf16 {vr(WD+16+4*k,4)}, {ar(96+4*k,4)}, {vr(BAND+4,4)}, 0')
            for k in range(4): ms.append(f'v_mfma_f32_16x16x32_bf16 {vr(CA+16+4*k,4)}, {ar(112,4)}, {uf(0,k)}, {vr(CA+16+4*k,4)}')
        if s == 2:
            for f in range(2):
                for ks in range(2):
                    for n2 in range(2*ks, 4):
                        o = n2 - 2*ks
                        ms.append(f'v_mfma_f32_16x16x32_bf16 {vr(CA+16+4*n2,4)}, {vr(WF+8*f+4*ks,4)}, {ar(KP[f]+2*(3-o),4)}, {vr(CA+16+4*n2,4)}')
    sb.append(len(ms))
    g = Gaps(ms)
    g.vec(0, f'v_mov_b32 v{VUC}, v{VUN}'); g.vec(0, f'v_add_u32 v{VEP}, s56, v{REB}')
    ure = [f'ds_read_b64 {vr(E0+2*n,2)}, v{VEP} offset:{512+512*n} ; tag=e{n}' for n in range(8)]
    exr = [f'ds_read_b128 {ar(96+4*k,4)}, v{VUN} offset:{512+512*k-48} ; tag=x' for k in range(4)] + [f'ds_read_b64 {ar(112+2*h,2)}, v239 offset:{8*h} ; tag=x' for h in range(2)]
    g.scalar(0, '@vm ex', strict=True)
    for i, l in enumerate(ure): g.vec(1+i//2, l)
    for i, l in enumerate(exr): g.vec(5+i, l)
    for s in range(8):
        b = sb[s]; r0 = b + (11 if s == 0 else 1)
        if s % 2 == 1: g.scalar(b, f'@vm t{((s+1) % 8)//2}' if s != 7 else '@vm u', strict=True)
        for i, l in enumerate(reads(s+1, VUC if s < 7 else VUN)): g.vec(r0+i, l + ' ; tag=r')
        g.scalar(sb[s+1]-1, 's_waitcnt lgkmcnt(0)', strict=True)
        if s in (1, 4, 5, 7):
            sc, ld = tdma((s-1)//2, 57)
            g.scalar(b+16, sc[0], strict=True); g.scalar(b+17, sc[1], strict=True)
            for i, l in enumerate(ld): g.vec(b+18+2*i, l, 3)
    g.scalar(12, '@lg e7', strict=True); g.scalar(25, '@lg x', strict=True)
    for i, (f, o) in enumerate([(f, o) for f in range(2) for o in range(4)]):
        g.vec(sb[1]+1+2*i, f'ds_read_b64 {ar(KP[f]+2*(3-o),2)}, v{RK} offset:{160*f + 96 - 32*o}')
    sc, ld = exdma(59)
    g.scalar(sb[2]+18, sc[0], strict=True)
    for i, l in enumerate(ld): g.vec(sb[2]+20+2*i, l, 3)
    m, ld = udma(55)
    g.scalar(sb[3]+16, m, strict=True)
    for j in range(4):
        g.vec(sb[3]+17+2*j, ld[j], 3)
        if j < 3: g.scalar(sb[3]+18+2*j, ustep, strict=True)
    nx = ['s_add_u32 s29, s29, 1', f's_mul_i32 s67, s40, {ST_ROW}', 's_add_u32 s40, s40, 4', 's_cmp_ge_u32 s29, 4', 's_cselect_b32 s40, s42, s40', 's_cselect_b32 s35, s39, 0',
          f's_mul_i32 s57, s40, {KC}', f's_add_u32 s57, s57, {WS_KV-2048}', 's_lshl_b32 s33, s35, 30', 's_add_u32 s59, s57, s33', 's_lshl_b32 s35, s35, 8', 's_sub_u32 s57, s57, s35',
          's_lshl_b32 s58, s40, 8', f's_add_u32 s58, s58, {WS_XNT}', 's_sub_u32 s35, s55, s35', f's_add_u32 s67, s67, {WS_ST}']
    gi = 1
    for l in nx: gi = g.scalar(gi, l) + 1
    assert gi < sb[1]
    g.vec(sb[5]+17, f'v_add_u32 v{VUN}, s35, v{RUB}')
    rot = ['s_mov_b32 s33, s56', 's_mov_b32 s56, s54', 's_mov_b32 s54, s55', 's_mov_b32 s55, s33', 's_mov_b32 s65, s60', 's_mov_b32 s60, s61', 's_mov_b32 s61, s62',
           's_mov_b32 s62, s63', 's_mov_b32 s63, s64', 's_mov_b32 s66, s67']
    gi = sb[6]+1
    for l in rot: gi = g.scalar(gi, l) + 1
    assert gi < sb[7]
    ch = [dict(earliest=sb[1]+2, deadline=sb[2]+22, ops=[(f'v_cvt_pk_bf16_f32 v{WF+n}, v{WD+2*n}, v{WD+2*n+1}', 1)]) for n in range(16)]
    g.fill(ch, start=sb[1]+2, width=2)
    def epi(y0, ntile, dreg, areg, start):
        ch = []
        for n in range(ntile):
            y = y0 + 4*n; u = E0 + 2*n
            for p in range(2):
                t = TM + 2*((2*n+p) % 8); o = OU + 2*(n % 4) + p
                ch.append(dict(earliest=start, ops=[(f'v_lshlrev_b32 v{t}, 16, v{u+p}', 1), (f'v_and_b32 v{t+1}, s3, v{u+p}', 1),
                      (f'v_fmac_f32 v{y+2*p}, s{dreg}, v{t}', 1), (f'v_fmac_f32 v{y+2*p+1}, s{dreg}, v{t+1}', 1), (f'v_cvt_pk_bf16_f32 v{o}, v{y+2*p}, v{y+2*p+1}', 1)]))
            ch.append(dict(ops=[(f'ds_write_b64 v{areg}, {vr(OU+2*(n%4),2)} offset:{512+512*n}', 2, [len(ch)-2, len(ch)-1])]))
        return ch
    g.vec(5, f'v_add_u32 v{VLP}, s56, v{VL16}')
    e = g.fill(epi(CP, 8, 65, VEP, 12), start=12, width=3)
    print('conv: epilogue ends at gap', e, 'steps', sb)
    sread = lambda n: [f'ds_read_b128 {vr(SR+4*i,4)}, v{VLP} offset:{512+i*1024} ; tag=s{i}' for i in range(n)]
    sstore = lambda n, so: [f'buffer_store_dwordx4 {vr(SR+4*i,4)}, v{VL16}, s[20:23], s{so} offen offset:{i*1024} sc1' for i in range(n)]
    for l in sread(4):
        while g.free(e) < 1: e += 1
        g.vec(e, l); e += 1
    assert e <= sb[4]-8, e
    late = sstore(4, 66)
    for gi, l in zip([sb[4], sb[4]+24, sb[5]+24, sb[6]], late): g.vec(gi, l, 3)
    g.scalar(sb[4]-2, 's_cmp_eq_u32 s29, 5', strict=True)
    g.v[sb[4]-1].append('s_cbranch_scc1 L_cv_tail')
    body = Asm(); g.emit(body)
    a.label('L_cv_loop')
    if STAMP[0]: a('s_memtime s[96:97]\ns_memrealtime s[98:99]\ns_add_u32 m0, s29, 3\ns_waitcnt lgkmcnt(0)\nv_writelane_b32 v254, s96, m0\nv_writelane_b32 v255, s98, m0')
    for l in resolve_waits(body.lines): a(l)
    a('s_branch L_cv_loop')
    a.label('L_cv_tail')
    stamp(a, 14)
    a(f'''
    s_lshl_b32 s33, s24, 13
    s_add_u32 s33, s33, {RB}
    v_add_u32 v4, s33, v{VL16}
    s_and_b32 s33, s24, 2
    s_lshl_b32 s33, s33, 13
    s_lshl_b32 s34, s39, 12
    s_add_u32 s33, s33, s34
    s_add_u32 s33, s33, {RB}
    v_add_u32 v5, s33, v{VL16}
    s_lshl_b32 s34, s39, 11
    s_add_u32 s67, s67, s34
    s_add_u32 s34, s34, s54
    v_add_u32 v{VEP}, s34, v{REB}
    v_add_u32 v{VLP}, s34, v{VL16}
    ''')
    for n in range(8):
        a(f'ds_write_b128 v4, {vr(CA+4*n,4)} offset:{n*1024}')
        if n % 2 == 0: a(late[n//2])
    for l in ure[:4]: a(l)
    a('s_waitcnt lgkmcnt(0)\ns_barrier')
    for h in range(2):
        for n in range(4): a(f'ds_read_b128 {vr(CA+16*h+4*n,4)}, v5 offset:{h*8192+n*1024}')
    a('s_waitcnt lgkmcnt(0)')
    for r in range(0, 16, 2): a(f'v_pk_add_f32 {vr(CA+r,2)}, {vr(CA+r,2)}, {vr(CA+16+r,2)}')
    g = Gaps(['']*200, cap=2); e = g.fill(epi(CA, 4, 60, VEP, 0), width=3); g.m = g.m[:e]; g.emit(a)
    for l in sread(2): a(l)
    for i, l in enumerate(sstore(2, 67)): a(f's_waitcnt lgkmcnt({1-i})'); a(l)
    a(f'''
    s_waitcnt vmcnt(0)
    s_barrier
    buffer_store_dword v{VONE}, v{VSIG}, s[20:23], s36 offen sc1
    ''')
    stamp_out(a, 1, 76)
    a('s_endpgm')
    spin(a, 'L_v_sp0', 'L_v_bk0', 'global_load_dword v5, v4, s[68:69] sc1', 5, '32')
    spin(a, 'L_v_sp1', 'L_v_bk1', XF_LD, 6, '1', 'v_min3_u32 v6, v6, v7, v8')

if __name__ == '__main__':
    a = Asm(); v_role(a)
    l, n = fix_hazards(a.lines, True); print(len(l))
```

```python
import copy
from common5 import *
from vrole import v_role, lane_table

def S1(): return OPT.get('s1', 6)
def LA1f(): return OPT.get('la1', 18 - S1())
FO = [(0, 0), (1, 0), (0, 1), (1, 1)]
def g1_dma(k):
    return (f's_add_u32 m0, s28, {k*8192}', f'buffer_load_dwordx4 v1, s[8:11], s{40+k} offen lds ; tag=w{k}',
            f'buffer_load_dwordx4 v1, s[12:15], s{40+k} offen offset:1024 lds ; tag=w{k}')
def g1_rd(k, i, half):
    mat, j = FO[i]; off = k*8192 + mat*1024 + half*512
    dst = AF + ((k & 1)*4 + i)*4 + 2*half
    return f'ds_read_b64_tr_b16 {vr(dst,2)}, v{2 + 2*(off >> 16) + j} offset:{off & 0xffff} ; tag=a{k}_{i}'
acc = lambda i, tt: ACC + (i*4+tt)*4
pend = lambda i, tt: PEND + (i*4+tt)*4
h_store = lambda tt, ho: f'buffer_store_dwordx4 {vr(ho,4)}, v8, s[16:19], s{30 if tt==0 else 77+tt} offen sc1 ; tag=phs{tt}'
VL16 = 9
VSIG, VONE, VPOLL, VLVL, VPOFF, VTHR, VTAB, VT = 216, 217, 218, 219, 220, 221, 222, 223
COUNT = f'buffer_atomic_add v{VONE}, v{VSIG}, s[92:95], 0 offen'
SIGNAL = f'buffer_store_dword v{VLVL}, v{VSIG}, s[20:23], s36 offen sc1'
LVLUP = f'v_add_u32 v{VLVL}, 1, v{VLVL}'
def poll_ld(tag): return f'buffer_load_dword v{VPOLL}, v{VPOFF}, s[4:7], 0 offen sc1 ; tag={tag}'

def geglu(parts, dl=None, early=None):
    ch = []; tc = 0; cv = []
    for tt, j in parts:
        ho = HO + 4*(tt & 1); g0, u0 = pend(2*j, tt), pend(2*j+1, tt); mine = []
        for r in range(4):
            g, u, t = g0+r, u0+r, TMP + (tc % 8); tc += 1
            c = dict(ops=[(f'v_fma_f32 v{t}, v{g}, v{g}, s32', 1), (f'v_mul_f32 v{u}, v{g}, v{u}', 1), (f'v_mul_f32 v{g}, v{g}, v{t}', 1),
                          (f'v_exp_f32 v{g}, -v{g}', 2), (f'v_add_f32 v{g}, 1.0, v{g}', 1), (f'v_rcp_f32 v{g}, v{g}', 2), (f'v_mul_f32 v{u}, v{u}, v{g}', 1)])
            if dl: c['deadline'] = dl(2*j, tt)
            if early: c['earliest'] = early(2*j+1, tt)
            ch.append(c); mine.append(len(ch)-1)
            if r & 1:
                c2 = dict(ops=[(f'v_cvt_pk_bf16_f32 v{ho+2*j+(r>>1)}, v{u-1}, v{u}', 1, mine[-2:])])
                if dl: c2['deadline'] = dl(2*j+1, tt)
                ch.append(c2); cv.append(len(ch)-1)
        if j == 1: ch.append(dict(ops=[(h_store(tt, ho), 3, cv)])); cv = []
    return ch
ALLP = [(tt, j) for tt in range(4) for j in range(2)]

def g1_block(kind, last_wait=None):
    ms = []
    for k in range(18):
        for i in range(4):
            for tt in range(4):
                d = pend(i, tt) if k == 17 else acc(i, tt)
                ms.append(f'v_mfma_f32_16x16x32_bf16 {vr(d,4)}, {vr(AF+((k&1)*4+i)*4,4)}, {xfrag(k,tt)}, {"0" if k==0 else vr(acc(i,tt),4)}')
    g = Gaps(ms); g.clean_vmem = True; last = kind == 'last'; LA1 = LA1f()
    for k in range(18):
        b = k*16; kn = (k+1) % 18
        if k % S1() == S1()-1 or (kind == 'first' and k == 2):
            w = last_wait if (last and k == 17) else f'@vm w{(k+S1()) % 18 if k != 2 else 5}'
            if k == 11: w += '|pclr' if kind == 'first' else '|phs3|pfl2'
            if k == 17 and kind == 'first': w += '|pxs'
            g.scalar(b, w, strict=True); g.scalar(b+1, 's_barrier', strict=True)
        rp = [1, 2, 4, 5, 8, 9, 12, 13]
        if not (last and k == 17):
            for i in range(4):
                for h in range(2): g.vec(b+rp[2*i+h], g1_rd(kn, i, h))
        g.scalar(b+7, f'@lg a{k}_3', strict=True)
        if not (last and k == 17): g.scalar(b+15, f'@lg a{kn}_1', strict=True)
        if kind == 'first' and LA1 > 12 and k < 4:
            ks = list(range(12, LA1+4)); sched = [ks[:2], ks[2:3], ks[3:5], ks[5:]] if LA1 == 15 else [ks[:2], ks[2:3], ks[3:4], ks[4:]]
            for n, kk in enumerate(sched[k]):
                m0, d0, d1 = g1_dma(kk % 18)
                if kk == 18: g.vec(b+9, 'v_add_u32 v1, s31, v1')
                g.scalar(b+[2, 9][n], m0, strict=True); g.vec(b+[3, 10][n], d0, 3); g.vec(b+[6, 14][n], d1, 3)
        elif not (last and k+LA1 >= 18):
            m0, d0, d1 = g1_dma((k+LA1) % 18)
            g.scalar(b+5, m0, strict=True); g.vec(b+6, d0, 3); g.vec(b+14, d1, 3)
        if k == 18-LA1 and not last:
            if not (kind == 'first' and LA1 == 15): g.vec(b+2, 'v_add_u32 v1, s31, v1')
        if k == 6 and not last:
            for gi, t in [(8, 's_lshl_b32 s91, s31, 4'), (9, 's_add_u32 s37, s37, s91'), (12, 's_sub_u32 s31, s88, s31')]: g.scalar(b+gi, t, strict=True)
        if k == (11 if kind != 'first' else 17): g.vec(b+2, LVLUP); g.vec(b+3, SIGNAL if kind != 'first' else SIGNAL.replace('s36', 's30'), 3)
    if kind != 'first':
        g.scalar(0, 's_mov_b32 s30, s89', strict=True)
        for tt in range(1, 4): g.scalar([0, 17, 18, 20][tt], f's_add_u32 s{77+tt}, s30, {tt*147456}', strict=True)
    g.scalar(5*16+12, 's_mov_b32 s89, s37', strict=True)
    return g

def g1_geglu(g, name):
    endg = g.fill(geglu(ALLP, dl=lambda i, tt: 17*16 + i*4 + tt - 1, early=lambda i, tt: max(0, i*4+tt-12)), width=5)
    print(name, 'geglu ends at gap', endg)

def check(g, gw, tag, n):
    e = g.stream(f'v_and_b32 v{VT}, 15, v{VTHR}\nv_lshrrev_b32 v{VTHR}, 4, v{VTHR}', gw-30); assert e <= gw, (e, gw)
    assert not g.s[gw] and not g.s[gw+1] and g.free(gw) > 0, (gw, g.s[gw], g.s[gw+1], g.v[gw])
    g.scalar(gw, f'@vm {tag}', strict=True); g.vec(gw, f'v_cmp_gt_u32 vcc, v{VT}, v{VPOLL}')
    g.scalar(gw+1, f's_cbranch_vccnz L_g_sp{n}', strict=True); g.s[gw+1].append(f'L_g_bk{n}:')

def tail_geglu(a, parts):
    a(f's_mov_b32 s30, s89\ns_mov_b32 s33, s32')
    for tt in range(1, 4): a(f's_add_u32 s{77+tt}, s30, {tt*147456}')
    for tt in sorted({t for t, j in parts}):
        ho = HO + 4*(tt & 1); js = [j for t, j in parts if t == tt]
        P = [(pend(2*j, tt)+p, pend(2*j+1, tt)+p, TMP+4*j+p, ho+2*j+p//2) for j in js for p in (0, 2)]
        for g, u, t, o in P: a(f'v_pk_fma_f32 {vr(t,2)}, {vr(g,2)}, {vr(g,2)}, s[32:33]')
        for g, u, t, o in P: a(f'v_pk_mul_f32 {vr(u,2)}, {vr(g,2)}, {vr(u,2)}')
        for g, u, t, o in P: a(f'v_pk_mul_f32 {vr(g,2)}, {vr(g,2)}, {vr(t,2)} neg_lo:[1,0] neg_hi:[1,0]')
        for g, u, t, o in P: a(f'v_exp_f32 v{g}, v{g}\nv_exp_f32 v{g+1}, v{g+1}')
        for g, u, t, o in P: a(f'v_pk_add_f32 {vr(g,2)}, {vr(g,2)}, 1.0 op_sel_hi:[1,0]')
        for g, u, t, o in P: a(f'v_rcp_f32 v{g}, v{g}\nv_rcp_f32 v{g+1}, v{g+1}')
        for g, u, t, o in P: a(f'v_pk_mul_f32 {vr(u,2)}, {vr(u,2)}, {vr(g,2)}')
        for g, u, t, o in P: a(f'v_cvt_pk_bf16_f32 v{o}, v{u}, v{u+1}')
        if 1 in js: a(h_store(tt, ho))

G2AF, NF, PF, LA2 = 144, 8, 6, 8
def unit(ap, line):
    u = ap*3 + line
    return 16 + 8*u if u < 8 else 176 + 8*(u-8)
def g2_loads(k):
    r = (k % 12)*8
    return [f'buffer_load_dwordx4 {ar(r,4)}, v239, s[16:19], s60 offen sc1 ; tag=h{k}', f'buffer_load_dwordx4 {ar(r+4,4)}, v240, s[16:19], s60 offen sc1 ; tag=h{k}',
            f'buffer_load_dwordx4 v236, s[84:87], s61 offen lds ; tag=d{k}', f'buffer_load_dwordx4 v237, s[84:87], s61 offen offset:1024 lds ; tag=d{k}',
            f'buffer_load_dwordx4 v238, s[84:87], s61 offen offset:2048 lds ; tag=d{k}']
def g2_next(k): return [f'v_readlane_b32 s62, v{VTAB}, {k}', 's_lshl_b32 s60, s62, 10']
def g2_fetch(k):
    ld = g2_loads(k); nx = g2_next(k+1) if k < 35 else ['', '']
    return '\n'.join([ld[0], f's_mul_i32 s61, s62, {32*1152}', ld[1], f's_add_u32 m0, s63, {(k%12)*12288}', nx[0], ld[2], nx[1], ld[3], ld[4]])

def korder_table():
    out = []
    for c in range(3):
        grp = [[10*p + q for p in range(3) for q in range(4)], [10*p + 4 + q for p in range(3) for q in range(2)] + [30, 31], [10*p + 6 + q for p in range(3) for q in range(2)],
               [32, 33, 10*c+8, 10*c+9], [10*p + 8 + q for p in range(3) if p != c for q in range(2)], [34, 35]]
        for r in range(8):
            t = []
            for n, gl in enumerate(grp): t += [gl[(i + r + (4*c if n == 0 else 2*c)) % len(gl)] for i in range(len(gl))]
            assert sorted(t) == list(range(36))
            out += t + [0]*28
    return out + [0]*512

def g_role(a, prev):
    g = g1_block('last', '@vm d2')
    g.scalar(1, '@vm poll', strict=True)
    g.vec(1, f'v_cmp_gt_u32 vcc, v{VT}, v{VPOLL}'); g.scalar(2, f's_cbranch_vccnz L_g_sp0', strict=True); g.s[2].append(f'L_g_bk0:')
    g.stream(f's_add_u32 s4, s76, s90 && s_addc_u32 s5, s77, 0\ns_mov_b32 s6, 16\nv_lshrrev_b32 v{VPOFF}, 3, v{VPOFF}\n' + poll_ld('pf'), 8)
    check(g, 5*16+8, 'pf', 1)
    g.stream('\n'.join(g2_next(0)), 4*16)
    e = 0
    for n, k in enumerate([6, 8, 9, 11, 13, 14, 15, 17]):
        e = g.stream(g2_fetch(n), max(e, k*16 + (2 if k % 6 == 5 else 0)))
    print('last fetch ends', e)
    for n in range(0, 40):
        g2 = copy.deepcopy(g)
        if n:
            cand = [i for i in range(272) if g2.used[i] == 1]
            for i in cand[::max(1, len(cand)//(4*n))]: g2.used[i] -= 1
        try: g1_geglu(g2, f'last (overfill {n})'); g = g2; break
        except RuntimeError: continue
    lastb = Asm(); g.emit(lastb)
    for l in resolve_waits(lastb.lines, prev=prev): a(l)
    stamp(a, 9)
    seq = [(k, ap, ln) for k in range(24) for ln in range(3) for ap in range(4)]
    RS = OPT.get('rs', 6)
    seq += [(k, ap, ln) for k in range(24, 36-RS) for ln in range(3) for ap in range(3)]
    for ap in range(3): seq += [(k, ap, ln) for k in range(36-RS, 36) for ln in range(3)]
    seq += [(k, 3, ln) for k in range(24, 36) for ln in range(3)]
    NS = len(seq); assert NS == 432
    first_of = {}
    for n, (k, ap, ln) in enumerate(seq): first_of.setdefault(k, n)
    def rd(n, half):
        k, ap, ln = seq[n]; off = (k % 12)*12288 + ln*1024 + half*6144
        return f'ds_read_b64_tr_b16 {vr(G2AF+(n%NF)*4+2*half,2)}, v{241+4*(off>>16)+ap} offset:{off&0xffff} ; tag=a{n}'
    pre = Asm()
    for n in range(PF):
        for h in range(2): pre(rd(n, h))
    NDEF = OPT.get('ndef', 2)
    tail_geglu(pre, ALLP[:8-NDEF])
    pre('s_waitcnt lgkmcnt(0)')
    for l in pre.lines: a(l)
    stamp(a, 10)
    ms = []
    for n, (k, ap, ln) in enumerate(seq):
        for tt in range(2):
            c = vr(unit(ap, ln)+4*tt, 4)
            ms.append(f'v_mfma_f32_16x16x32_bf16 {c}, {vr(G2AF+(n%NF)*4,4)}, {ar((k%12)*8+tt*4,4)}, {"0" if k==0 else c}')
    g = Gaps(ms); g.clean_vmem = True
    NG = len(ms)
    S2 = OPT.get('s2', 3)
    checks = {4: 2, 12: 3, 18: 4, 22: 5, 26: 6}
    PD = OPT.get('pd', 3)
    sigs = (5, 14)
    clear = set(); tclear = set()
    for k in range(36):
        n0 = first_of[k]; L = 12 if k < 24 else 9
        if k + LA2 < 36: clear |= {n0+i for i in ([2, 4, 7, 9, 11] if L == 12 else ([1, 3, 5, 7, 8] if (k+1) % S2 else [1, 4, 6, 7, 8]))}
        if k + PD in checks: clear.add(n0)
        if k in sigs: clear.add(n0+8)
        if k < 4*NDEF: tclear |= {n0+i for i in (3, 5, 10)}
    nA = first_of[36-RS]
    for ap in range(3): clear |= {nA + 3*RS*(ap+1) + 2 + i*(RS if ap < 2 else 3) for i in range(3)}
    nB = nA + 9*RS
    xpos = [first_of[28]+i for i in (1, 6, 14, 17, 24, 29, 33)]
    clear |= set(xpos)
    IL = OPT.get('il', 20)
    clear |= {nB + i for i in range(IL, min(IL+10, 30))}
    g.resv = {2*n for n in clear}
    bars = {}
    for k in range(S2, 36, S2): bars[first_of[k] - PF] = min(k+S2-1, 35)
    for n in range(NS):
        if n in bars:
            g.scalar(2*n-2, f'@vm d{bars[n]}' + ('|phs3' if seq[n][0] in sigs else ''), strict=True); g.scalar(2*n-1 if n % 2 else 2*n, 's_barrier', strict=True)
            assert n not in clear or n % 2, n
            assert n-1 not in clear, n
        if n + PF < NS:
            g.vec(2*n+1 if n in clear | tclear else 2*n, rd(n+PF, 0)); g.vec(2*n+1, rd(n+PF, 1))
        if n % 2 == 1 and n+2 < NS: g.scalar(2*n+1, f'@lg a{n+2}', strict=True)
    for k in range(36):
        b = 2*first_of[k]
        if k + PD in checks: g.vec(b, poll_ld(f'p{k}'), 3)
        if k in sigs: g.vec(b+12, LVLUP); g.vec(b+16, SIGNAL, 3)
    for n in tclear: g.used[2*n] += 2
    for k in range(36):
        b = 2*first_of[k]
        if k in checks: check(g, b if b % 4 == 0 else b-2, f'p{k-PD}', checks[k])
        if k + LA2 < 36:
            e = g.stream(g2_fetch(k+LA2), b+2); assert e <= 2*first_of[k+1]+1, (k, e, 2*first_of[k+1])
    for n in tclear: g.used[2*n] -= 2
    if NDEF:
        e = g.fill(geglu(ALLP[8-NDEF:]), width=4)
        print('deferred geglu ends at gap', e, 'limit', 2*first_of[9]+8); assert e <= 2*first_of[9]+8
    PEER_LD = 'buffer_load_dword v4, v7, s[20:23], s45 offen sc1'
    X, IN, XU, SU = 116, 80, 16, 40
    e = g.stream(f'''
    s_lshl_b32 s33, s82, 1
    s_add_u32 s33, s33, s82
    s_lshl_b32 s33, s33, 2
    s_add_u32 s35, s33, s81
    v_and_b32 v12, 15, v0
    v_lshrrev_b32 v13, 4, v0
    v_mul_u32_u24 v2, 1152, v12
    v_lshl_add_u32 v2, v13, 3, v2
    s_mul_i32 s38, s83, {16*1152}
    s_lshl_b32 s34, s35, 5
    s_add_u32 s38, s38, s34
    s_add_u32 s39, s38, {16*1152}
    v_min_u32 v5, 5, v0
    v_lshrrev_b32 v12, 1, v5
    v_and_b32 v5, 1, v5
    v_mul_u32_u24 v5, 15, v5
    v_lshl_add_u32 v5, v12, 6, v5
    s_lshl_b32 s34, s35, 4
    v_add_u32 v5, s34, v5
    v_mul_u32_u24 v5, 3641, v5
    v_lshrrev_b32 v5, 16, v5
    v_lshlrev_b32 v5, 7, v5
    s_mov_b32 s68, {WS_FLG+0x10000}
    v_lshrrev_b32 v12, 2, v0
    v_and_b32 v13, 3, v0
    v_mul_u32_u24 v1, {ST_ROW}, v12
    v_lshl_add_u32 v1, v13, 4, v1
    s_mul_i32 s37, s35, {16*ST_ROW}
    s_lshl_b32 s34, s83, 5
    s_add_u32 s37, s37, s34
    s_add_u32 s40, s37, {WS_ST}
    s_add_u32 s41, s40, {64*ST_ROW-1024}
    s_add_u32 s42, s41, {64*ST_ROW-1024}
    s_add_u32 s28, s63, {TOP}
    v_lshlrev_b32 v3, 6, v12
    v_lshl_add_u32 v3, v13, 3, v3
    v_add_u32 v3, s28, v3
    s_mov_b32 s8, s74
    s_mov_b32 s9, s75
    s_mov_b32 s10, {L*0+2048*576*2}
    s_mov_b32 s12, s70
    s_mov_b32 s13, s71
    s_mov_b32 s14, {2048*576*2}
    s_add_u32 s43, s67, 3072
    s_add_u32 s44, s67, 6144
    v_and_b32 v7, 3, v0
    v_lshlrev_b32 v7, 7, v7
    s_lshl_b32 s33, s81, 7
    s_sub_u32 s45, s36, s33
    ''', 2*first_of[15]); assert e < 2*first_of[28], e
    e = g.stream('\n'.join(f'buffer_load_dwordx2 {vr(X+4*ln+2*tt,2)}, v2, s[12:15], s{38+tt} offen offset:{128*ln} ; tag=xx' for ln in range(3) for tt in range(2)) + '\n' + PEER_LD + ' ; tag=xp', 2*first_of[28])
    assert e == 2*xpos[-1]+1, e
    for ap in range(3):
        txt = []
        for ln in range(3):
            r = unit(ap, ln)
            txt += [f'v_cvt_pk_bf16_f32 v{r+q}, v{r+2*q}, v{r+2*q+1}' for q in range(4)]
            txt.append(f'buffer_store_dwordx4 {vr(r,4)}, v{VL16}, s[20:23], s{64+ap} offen offset:{ln*1024} sc1 ; tag=snd')
        e = g.stream('\n'.join(txt), 2*(nA+3*RS*(ap+1)))
        print('send', ap, 'ends', e, 'of', NG)
    inld = lambda ap: [f'buffer_load_dwordx4 {vr(IN+12*ap+4*ln,4)}, v{VL16}, s[20:23], s{[67,43,44][ap]} offen offset:{ln*1024} sc1 ; tag=in' for ln in range(3)]
    SF_LD = 'buffer_load_dword v6, v5, s[20:23], s68 offen sc1'
    e = g.scalar(e, '@vm xp')
    e = g.stream('v_cmp_gt_u32 vcc, 5, v4\ns_cbranch_vccnz L_g_spf', e); g.s[e-1].append('L_g_bkf:')
    e2 = g.stream('\n'.join(f'v_lshlrev_b32 v{XU+2*q}, 16, v{X+q}\nv_and_b32 v{XU+2*q+1}, s3, v{X+q}' for q in range(12)) + '\ns_mov_b32 m0, s28', e)
    e = g.stream('\n'.join([SF_LD] + inld(0) + inld(1) + inld(2)), max(e, 2*(nB+IL)))
    print('inbox loads end', e, e2)
    body = Asm(); g.emit(body)
    bl = resolve_waits(body.lines, prev=lastb.lines + pre.lines)
    cnt = 0
    for l in bl:
        if l.startswith('v_mfma'):
            SP = {288: 11, 576: 12, 2*nB: 13, 2*first_of[28]: 24, 2*nA: 25, 2*nA+6*RS: 26, 2*nA+12*RS: 27, 2*(nB+IL)-2: 28}
            if cnt in SP and not OPT.get('noloopstamp'): stamp(a, SP[cnt])
            cnt += 1
        X_ = OPT.get('x', 0)
        if X_ == 1 and 'tag=h' in l: continue
        if X_ == 2 and 'tag=d' in l: continue
        if X_ == 3 and l.startswith('s_barrier'): continue
        if X_ == 4 and 'vmcnt' in l: continue
        if X_ == 5 and ('tag=h' in l or 'tag=d' in l): continue
        if X_ == 6 and 'tag=xx' in l: continue
        if X_ == 7 and 'tag=snd' in l: l = l.replace(' sc1', '')
        if X_ == 8 and ('tag=xx' in l or 'tag=xp' in l or 'tag=in' in l or 'L_g_spf' in l): continue
        a(l)
    stamp(a, 14)
    OWN = unit(3, 0); T = 64
    a('s_waitcnt vmcnt(9)\nv_cmp_gt_u32 vcc, 1, v6\ns_nop 1\ns_cbranch_vccnz L_g_sps')
    a.label('L_g_bks')
    for ln in range(3): a(f'buffer_load_dwordx4 v1, s[20:23], s{40+ln} offen offset:{ln*1024} sc1 lds')
    def chk(ap):
        r = IN + 12*ap
        return f'v_max3_u32 v7, v{r}, v{r+1}, v{r+2}\n' + '\n'.join(f'v_max3_u32 v7, v7, v{r+q}, v{r+q+1}' for q in (3, 5, 7, 9)) + f'\nv_max_u32 v7, v7, v{r+11}\nv_not_b32 v7, v7'
    for ap in range(3):
        a(f's_waitcnt vmcnt({9-3*ap})')
        a(chk(ap)); a(f'v_cmp_gt_u32 vcc, 1, v7\ns_nop 1\ns_cbranch_vccnz L_g_spi{ap}')
        a.label(f'L_g_bki{ap}')
        stamp(a, 16+ap)
        if ap == 2:
            a('s_waitcnt vmcnt(0)')
            for ln in range(3):
                for tt in range(2): a(f'ds_read_b64_tr_b16 {vr(X+4*ln+2*tt,2)}, v3 offset:{ln*1024+32*tt}')
        for ln in range(3):
            r = IN + 12*ap + 4*ln
            for q in range(4): a(f'v_lshlrev_b32 v{T+2*q}, 16, v{r+q}\nv_and_b32 v{T+2*q+1}, s3, v{r+q}')
            for q in range(4): a(f'v_pk_add_f32 {vr(OWN+8*ln+2*q,2)}, {vr(OWN+8*ln+2*q,2)}, {vr(T+2*q,2)}')
    a(f's_mov_b32 s32, {fx(-LOG2E/LAM**2)}\ns_waitcnt lgkmcnt(0)')
    stamp(a, 20)
    for ln in range(3):
        f = OWN + 8*ln; x = XU + 8*ln; u = SU
        for p in range(0, 8, 2): a(f'v_pk_mul_f32 {vr(T+p,2)}, {vr(f+p,2)}, s[32:33] op_sel_hi:[1,0]')
        for r in range(8): a(f'v_exp_f32 v{T+r}, v{T+r}')
        for q in range(4): a(f'v_lshlrev_b32 v{u+2*q}, 16, v{X+4*ln+q}\nv_and_b32 v{u+2*q+1}, s3, v{X+4*ln+q}')
        for p in range(0, 8, 2): a(f'v_pk_add_f32 {vr(T+p,2)}, {vr(T+p,2)}, 1.0 op_sel_hi:[1,0]')
        for r in range(8): a(f'v_rcp_f32 v{T+r}, v{T+r}')
        for p in range(0, 8, 2): a(f'v_pk_mul_f32 {vr(f+p,2)}, {vr(f+p,2)}, {vr(u+p,2)}')
        for p in range(0, 8, 2): a(f'v_pk_fma_f32 {vr(f+p,2)}, {vr(f+p,2)}, {vr(T+p,2)}, {vr(x+p,2)}')
        for q in range(4): a(f'v_cvt_pk_bf16_f32 v{f+q}, v{f+2*q}, v{f+2*q+1}')
        for tt in range(2): a(f'buffer_store_dwordx2 {vr(f+2*tt,2)}, v2, s[8:11], s{38+tt} offen offset:{128*ln} sc1')
    stamp(a, 21)
    stamp_out(a, 1, 76)
    a('s_endpgm')
    for k in range(7): spin(a, f'L_g_sp{k}', f'L_g_bk{k}', poll_ld('x').split(';')[0], VPOLL, f'v{VT}')
    spin(a, 'L_g_sps', 'L_g_bks', SF_LD, 6, '1')
    spin(a, 'L_g_spf', 'L_g_bkf', PEER_LD, 4, '5')
    for ap in range(3): spin(a, f'L_g_spi{ap}', f'L_g_bki{ap}', '\n'.join(inld(ap)), 7, '1', chk(ap))

def fused_kernel(a):
    a.label(NAME + '_kernel')
    a('s_cmp_ge_u32 s2, 256\ns_cbranch_scc1 L_end')
    if STAMP[0]: a(f'v_mov_b32 v254, {SPIN}')
    stamp(a, 0)
    a('''
    s_load_dwordx2 s[70:71], s[0:1], 0
    s_load_dwordx4 s[72:75], s[0:1], 64
    s_load_dwordx4 s[92:95], s[0:1], 96
    s_load_dwordx4 s[84:87], s[0:1], 80
    s_load_dwordx8 s[8:15], s[0:1], 8
    s_load_dwordx4 s[16:19], s[0:1], 40
    s_getpc_b64 s[68:69]
    ''')
    a.label('L_pc')
    a('''
    s_lshr_b32 s31, s2, 3
    s_lshl_b32 s33, s31, 11
    v_lshrrev_b32 v1, 4, v0
    v_lshl_add_u32 v1, v1, 7, s33
    v_min_u32 v214, code_end-L_pc-4, v1
    global_load_dword v253, v214, s[68:69]
    v_lshrrev_b32 v1, 6, v0
    v_and_b32 v0, 63, v0
    v_readfirstlane_b32 s24, v1
    s_and_b32 s3, s2, 7
    s_and_b32 s25, s3, 1
    s_lshl_b32 s25, s25, 3
    s_lshr_b32 s27, s31, 2
    s_add_u32 s25, s25, s27            ; m
    s_lshr_b32 s81, s3, 1              ; k split
    s_and_b32 s82, s31, 3
    s_lshr_b32 s38, s24, 1             ; fh
    s_and_b32 s39, s24, 1              ; tg
    v_lshrrev_b32 v10, 3, v0
    v_and_b32 v11, 7, v0
    s_lshl_b32 s33, s25, 7
    s_lshl_b32 s34, s39, 6
    s_add_u32 s33, s33, s34
    s_lshl_b32 s34, s38, 3
    s_add_u32 s33, s33, s34
    v_add_u32 v12, s33, v10
    v_mul_u32_u24 v12, 1152, v12
    v_lshl_add_u32 v12, v11, 4, v12
    s_lshl_b32 s41, s27, 7
    ''')
    for j in range(1, 9): a(f's_add_u32 s33, s{39+2*j}, 128\ns_cmp_eq_u32 s33, 1152\ns_cselect_b32 s{41+2*j}, 0, s33')
    a(f'''
    v_add_u32 v13, {16*1152}, v12
    s_mov_b32 s6, {L*D*2}
    s_mov_b32 s7, 0x20000
    s_add_u32 s33, s25, s81
    s_and_b32 s33, s33, 1
    s_lshl_b32 s33, s33, 2
    s_add_u32 s33, s33, s82
    s_cmp_eq_u32 s33, 7
    s_waitcnt lgkmcnt(0)
    s_cbranch_scc1 L_vrole
    s_mov_b32 s4, s70
    s_mov_b32 s5, s71
    ''')
    raw = lambda rg, j: [52, 16, 88, 124][rg] + j*4
    xld = lambda rg, j: f'buffer_load_dwordx4 {vr(raw(rg,j),4)}, v{12+(rg&1)}, s[4:7], s{41+2*j} offen'
    stamp(a, 29)
    for j in range(9): a(xld(0, j))
    stamp(a, 30)
    XS, XB = 90112, 36864
    WR, RD0, XA, XO_ = 224, 226, 14, 230
    su = Asm()
    for j in range(9): su(f's_mul_i32 s{40+2*j}, s{41+2*j}, {64*9216//128}')
    srd(su, 8, 72, D*F*2); srd(su, 12, 74, D*F*2+1024, -1024)
    su(f'''
    s_cmp_eq_u32 s82, 3
    s_cselect_b32 s91, -2, -1
    s_and_b32 s33, s81, s91
    s_mul_i32 s37, s33, 18
    s_mul_i32 s33, s82, 5
    s_add_u32 s37, s37, s33            ; first 128-byte column line
    s_lshl_b32 s33, s24, 3
    v_add_u32 v1, s33, v10
    v_mul_u32_u24 v1, 9216, v1
    v_bfe_u32 v2, v0, 4, 1
    s_lshl_b32 s33, s39, 1
    v_or_b32 v2, s33, v2
    v_lshlrev_b32 v2, 1, v2
    v_xor_b32 v2, v2, v11
    v_lshl_add_u32 v1, v2, 4, v1
    s_lshl_b32 s33, s37, 7
    v_add_u32 v1, s33, v1
    s_lshl_b32 s28, s24, 11
    v_lshrrev_b32 v160, 4, v0          ; q
    v_bfe_u32 v161, v0, 2, 2           ; rr
    v_and_b32 v162, 3, v0
    v_lshlrev_b32 v2, 11, v160
    v_lshl_add_u32 v2, v161, 7, v2
    v_lshl_add_u32 v2, v162, 3, v2
    v_bfe_u32 v163, v0, 3, 2           ; (q&1)*2 + (rr>>1)
    s_lshl_b32 s33, s38, 1
    v_xor_b32 v163, s33, v163
    v_lshl_add_u32 v2, v163, 5, v2
    v_xor_b32 v3, 32, v2
    s_mov_b32 s3, 0xffff0000
    s_lshl_b32 s33, s38, 2
    v_add_u32 v163, s33, v160
    v_xor_b32 v163, v163, v11
    s_lshl_b32 s33, s39, 11
    s_lshl_b32 s34, s38, 10
    s_add_u32 s34, s34, s33
    s_add_u32 s34, s34, {XS}
    v_lshl_add_u32 v{WR}, v10, 7, s34
    v_lshl_add_u32 v{WR}, v163, 4, v{WR}
    v_add_u32 v{WR+1}, {XB}, v{WR}
    v_and_b32 v164, 15, v0             ; t
    v_lshrrev_b32 v165, 1, v164
    v_xor_b32 v165, v165, v160
    s_add_u32 s33, s33, {XS}
    v_lshl_add_u32 v{RD0}, v164, 7, s33
    v_lshl_add_u32 v{RD0}, v165, 4, v{RD0}
    v_xor_b32 v{RD0+1}, 64, v{RD0}
    v_add_u32 v{RD0+2}, {XB}, v{RD0}
    v_add_u32 v{RD0+3}, {XB}, v{RD0+1}
    s_mul_i32 s59, s81, 9
    s_min_u32 s34, s82, 2
    s_mul_i32 s34, s34, 3
    s_add_u32 s59, s59, s34
    s_add_u32 s58, s59, s38
    s_add_u32 s59, s59, 2
    v_lshrrev_b32 v165, 2, v0
    v_lshl_add_u32 v166, v165, 7, s33
    v_and_b32 v167, 1, v0
    v_lshl_add_u32 v166, v167, 3, v166
    v_bfe_u32 v167, v0, 1, 1
    v_xor_b32 v165, v10, v167
    ''')
    for i in range(2):
        su(f'''
        s_lshr_b32 s33, s{58+i}, 2
        s_sub_u32 s33, s33, s27
        s_cselect_b32 s34, 9, 0
        s_add_u32 s33, s33, s34
        s_lshl_b32 s33, s33, 12
        s_and_b32 s34, s{58+i}, 3
        s_lshl_b32 s34, s34, 1
        v_xor_b32 v167, s34, v165
        v_lshl_add_u32 v{XA+i}, v167, 4, v166
        v_add_u32 v{XA+i}, s33, v{XA+i}
        ''')
    LPF = OPT.get('lpf', 3)
    if LPF == 3:
        su(f'''
        v_min_u32 v165, 17, v0
        v_mul_u32_u24 v212, 9216, v165
        s_lshl_b32 s33, s25, 1
        s_add_u32 s33, s33, s38
        s_mul_i32 s33, s33, {18*9216}
        s_mul_i32 s34, s81, 18
        s_min_u32 s60, s82, 2
        s_add_u32 s34, s34, s60
        s_lshl_b32 s34, s34, 7
        s_add_u32 s33, s33, s34
        v_add_u32 v212, s33, v212
        s_cmp_eq_u32 s39, 0
        s_cselect_b32 s60, s72, s74
        s_cselect_b32 s61, s73, s75
        ''')
    elif LPF:
        su(f'''
        v_min_u32 v165, 53, v0
        v_mul_u32_u24 v166, 86, v165
        v_lshrrev_b32 v166, 8, v166
        v_mul_u32_u24 v166, {1152-384}, v166
        v_lshl_add_u32 v212, v165, 7, v166
        s_lshl_b32 s33, s27, 2
        s_add_u32 s33, s33, s24
        s_mul_i32 s33, s33, {36*1152}
        s_mul_i32 s34, s81, {1152*1152}
        s_add_u32 s33, s33, s34
        s_min_u32 s34, s82, 2
        s_mul_i32 s34, s34, 384
        s_add_u32 s33, s33, s34
        s_lshr_b32 s34, s25, 3
        s_mul_i32 s34, s34, {18*1152}
        v_add_u32 v212, s33, v212
        s_sub_u32 s33, {18*1152}, s34
        v_add_u32 v213, s33, v212
        v_add_u32 v212, s34, v212
        ''')
    NE = OPT.get('ne', 4)
    for j in range(NE): a(xld(1, j))
    for l in su.lines: a(l)
    if OPT.get('stubs', 1):
        a('''
        s_mov_b64 exec, 0
        s_cmp_eq_u32 s24, 1
        s_cbranch_scc1 L_pg1
        s_cmp_eq_u32 s24, 2
        s_cbranch_scc1 L_pg2
        s_cmp_eq_u32 s24, 3
        s_cbranch_scc1 L_pg3
        s_branch L_pg0
        L_back:
        s_mov_b64 exec, -1
        ''')
    stamp(a, 31)
    for j in range(NE, 9): a(xld(1, j))
    a(f'v_add_u32 v12, {32*1152}, v12\nv_add_u32 v13, {32*1152}, v13\ns_mov_b32 s33, 0x3f803f80')
    if OPT.get('stubs', 1): a('s_branch L_main\n.p2align 12\nL_main:')
    stamp(a, 1)
    S, Q = 208, 210
    tq = 0
    xrd = lambda k, rg: f'ds_read_b128 {xfrag(k, rg)}, v{RD0+2*(rg&1)+(k&1)} offset:{(k>>1)*4096} ; tag=x{k}'
    xtr = lambda i, rg: f'ds_read_b64_tr_b16 {vr(80+4*rg+2*i,2)}, v{XA+i} offset:{(rg&1)*XB} ; tag=xt{i}'
    for rg in range(4):
        if rg < 2: vm = [[xld(rg+2, j)] for j in range(9)]
        else:
            vm = []
            for k in (range(0, 5) if rg == 2 else range(5, 11)):
                m0, d0, d1 = g1_dma(k); vm += [[m0, 's_nop 0', d0], [d1]]
        ne = len(vm) - 7
        if rg > 0:
            for i in range(2): a(xtr(i, rg-1))
        if rg == 2:
            for j in range(9): a(f's_add_u32 s{41+2*j}, s{40+2*j}, {32*9216}')
        a(f's_waitcnt vmcnt({[9, 9, 9 + (LPF > 0), 10 + [0, 1, 2, 1][LPF]][rg]})')
        if rg == 0: stamp(a, 23)
        m = [f'v_mov_b32 v{S}, 0', f'v_mov_b32 v{Q}, 0']
        for j in range(9):
            for r in range(4): m += [f'v_dot2c_f32_bf16 v{S}, s33, v{raw(rg,j)+r}', f'v_dot2c_f32_bf16 v{Q}, v{raw(rg,j)+r}, v{raw(rg,j)+r}']
        interleave(a, m, vm[:ne]); vm = vm[ne:]
        for pat in ('quad_perm:[1,0,3,2]', 'quad_perm:[2,3,0,1]', 'row_half_mirror'):
            a(f'v_add_f32_dpp v{S}, v{S}, v{S} {pat} row_mask:0xf bank_mask:0xf\nv_add_f32_dpp v{Q}, v{Q}, v{Q} {pat} row_mask:0xf bank_mask:0xf')
        a(f'''
        v_mul_f32 v{S}, {fx(1.0/D)}, v{S}
        v_mul_f32 v{Q}, {fx(1.0/D)}, v{Q}
        v_fma_f32 v{Q}, -v{S}, v{S}, v{Q}
        v_max_f32 v{Q}, 0, v{Q}
        v_cvt_pk_bf16_f32 v{S}, v{Q}, v{S}
        v_lshlrev_b32 v{Q}, 16, v{S}
        v_add_f32 v{Q}, {fx(1e-5)}, v{Q}
        v_cvt_pk_bf16_f32 v{Q}, v{Q}, v{Q}
        v_and_b32 v{Q}, s3, v{Q}
        v_sqrt_f32 v{Q}, v{Q}
        v_and_b32 v{S}, s3, v{S}
        v_cvt_pk_bf16_f32 v{Q}, v{Q}, v{Q}
        v_and_b32 v{Q}, s3, v{Q}
        v_rcp_f32 v{Q}, v{Q}
        s_nop 0
        v_mul_f32 v{Q}, {fx(LAM)}, v{Q}
        v_mul_f32 v{S}, v{S}, v{Q}
        ''')
        for j in range(9):
            x0 = raw(rg, j); ts = []
            for r in range(4): ts.append(160 + 2*(tq % 8)); tq += 1
            for r in range(4): a(f'v_lshlrev_b32 v{ts[r]}, 16, v{x0+r}\nv_and_b32 v{ts[r]+1}, s3, v{x0+r}')
            for r in range(4): a(f'v_pk_fma_f32 {vr(ts[r],2)}, {vr(ts[r],2)}, {vr(Q,2)}, {vr(S,2)} op_sel_hi:[1,0,0] neg_lo:[0,0,1] neg_hi:[0,0,1]')
            for r in range(4): a(f'v_cvt_pk_bf16_f32 v{x0+r}, v{ts[r]}, v{ts[r]+1}')
            if rg > 0: a(xrd(2*j, rg-1)); a(xrd(2*j+1, rg-1))
            a(f'ds_write_b128 v{WR+(rg&1)}, {vr(x0,4)} offset:{j*4096}')
            if vm:
                for l in vm.pop(0): a(l)
        if rg == 1 and LPF: a('global_load_dword v253, v212, s[84:85]' if LPF < 3 else f'global_load_dword v253, v212, s[60:61] offset:{15*128}')
        if rg == 2 and LPF == 2: a('global_load_dword v253, v213, s[84:85]')
        a(f's_waitcnt {f"vmcnt({16 + (LPF == 2)}) " if rg == 3 else ""}lgkmcnt(0)\ns_barrier')
    stamp(a, 2)
    pre = Asm()
    for k in range(11):
        for l in g1_dma(k)[1:]: pre(l)
    n0 = len(pre.lines)
    pre(xrd(0, 3))
    for i in range(4):
        for h in range(2): pre(g1_rd(0, i, h))
    pre(xrd(1, 3))
    for l in g1_dma(11): pre(l)
    pre('s_waitcnt lgkmcnt(5)')
    for l in pre.lines[n0:]: a(l)
    g = g1_block('first')
    rest = [xtr(0, 3), xtr(1, 3)] + [xrd(k, 3) for k in range(2, 18)]
    slots = [0, 0, 3, 3, 7, 7, 10, 10, 11, 11, 15, 15, 16, 16, 19, 19, 23, 23]
    if LA1f() > 12: slots = [0, 0, 1, 2, 4, 5, 7, 7, 8, 9, 11, 11, 15, 15, 16, 16, 23, 23]
    for gi, l in zip(slots, rest): g.vec(gi, l)
    g.scalar(29, '@lg x17', strict=True)
    FILL = 232
    e = g.stream(f'''
    s_mov_b32 s76, s94
    s_mov_b32 s77, s95
    s_mov_b32 s20, s94
    s_mov_b32 s21, s95
    s_mov_b32 s22, {WS_SIZE}
    s_mov_b32 s23, 0x20000
    v_lshlrev_b32 v{VL16}, 4, v0
    s_movk_i32 s33, 128
    s_cmp_eq_u32 s82, 3 && s_cselect_b32 s34, s33, {OOB} && s_cselect_b32 s31, {18*128}, s33 && s_cselect_b32 s88, s33, 256 && s_cselect_b32 s35, 5, 3
    s_lshl_b32 s26, s25, 2
    s_add_u32 s26, s26, s81
    s_and_b32 s33, s26, s91
    s_lshl_b32 s33, s33, 7
    s_add_u32 s90, s33, {WS_FLG}
    s_lshl_b32 s33, s82, 2
    s_add_u32 s36, s90, s33
    v_mov_b32 v{VSIG}, {OOB}
    v_mov_b32 v{VLVL}, 0
    s_cmp_eq_u32 s24, 0 && s_cselect_b32 s33, 0, {OOB} && s_cselect_b32 s34, s34, {OOB}
    v_writelane_b32 v{VSIG}, s33, 0
    v_writelane_b32 v{VSIG}, s34, 1
    {SIGNAL}
    s_mul_i32 s30, s25, {8*144*1024}
    s_lshl_b32 s33, s37, 11
    s_add_u32 s37, s30, s33
    s_add_u32 s30, s36, 0x8000
    {SIGNAL.replace('s36', 's30')} ; tag=pclr
    ''', 0, dense=True)
    print('first block: fill and clear end at gap', e); assert e <= 3*16+8
    e = g.stream(f'''
    v_add_u32 v4, 0x10000, v2
    v_add_u32 v5, 0x10000, v3
    s_lshl_b32 s33, s24, 12
    s_add_u32 s33, s33, {TOP}
    s_lshl_b32 s34, s38, 10
    s_add_u32 s34, s34, 2048
    v_and_b32 v96, 15, v0
    v_lshl_add_u32 v96, v96, 7, s33
    v_bfe_u32 v97, v0, 4, 1
    v_lshl_add_u32 v96, v97, 3, v96
    v_lshrrev_b32 v97, 5, v0
    v_xor_b32 v97, v97, v11
    v_lshl_add_u32 v96, v97, 4, v96
    v_xor_b32 v97, 32, v96
    v_xor_b32 v98, 64, v96
    v_xor_b32 v99, 96, v96
    v_xor_b32 v100, v10, v11
    v_lshlrev_b32 v100, 4, v100
    v_lshl_add_u32 v100, v10, 7, v100
    v_add_u32 v100, s33, v100
    v_add_u32 v101, s34, v100
    ''' + '\n'.join(f'ds_write_b64 v{96+rg}, {vr(80+4*rg+2*i,2)} offset:{i*2048}' for rg in range(4) for i in range(2)) + f'''
    ds_read_b128 v[104:107], v100
    ds_read_b128 v[108:111], v100 offset:1024
    ds_read_b128 v[112:115], v101 ; tag=xo
    s_mul_i32 s33, s25, {576*256}
    s_lshl_b32 s34, s39, 7
    s_add_u32 s33, s33, s34
    s_add_u32 s33, s33, {WS_XNT}
    s_cmp_eq_u32 s82, 3 && s_cselect_b32 s33, 0x7f000000, s33
    s_lshl_b32 s58, s58, 12
    s_lshl_b32 s59, s59, 12
    s_add_u32 s58, s58, s33
    s_add_u32 s59, s59, s33
    s_lshl_b32 s34, s38, 11
    s_add_u32 s59, s59, s34
    v_lshlrev_b32 v{XO_}, 8, v10
    v_lshl_add_u32 v{XO_}, v11, 4, v{XO_}
    ''', max(e, 34), dense=True)
    e = g.scalar(e, '@lg xo') + 1
    e = g.stream(f'''
    buffer_store_dwordx4 v[104:107], v{XO_}, s[20:23], s58 offen sc1
    s_mov_b32 s4, s92
    s_mov_b32 s5, s93
    s_mov_b32 s6, 0
    buffer_store_dwordx4 v[108:111], v{XO_}, s[20:23], s58 offen offset:2048 sc1
    s_and_b32 s33, s2, 7
    s_lshl_b32 s33, s33, 5
    s_add_u32 s92, s92, s33 && s_addc_u32 s93, s93, 0
    buffer_store_dwordx4 v[112:115], v{XO_}, s[20:23], s59 offen sc1 ; tag=pxs
    ''', e)
    print('first block: xnT stores end at gap', e); assert e <= 11*16
    e = g.stream(f'''
    s_mov_b32 s94, 4
    s_mov_b32 s95, 0x20000
    v_mov_b32 v{VONE}, 1
    {COUNT}
    v_add_u32 v6, 0x20000, v2
    v_add_u32 v7, 0x20000, v3
    v_lshlrev_b32 v{VPOFF}, 5, v11
    v_mov_b32 v{VT}, 32
    v_mov_b32 v{FILL}, -1
    v_mov_b32 v{FILL+1}, -1
    v_mov_b32 v{FILL+2}, -1
    v_mov_b32 v{FILL+3}, -1
    s_lshl_b32 s33, s25, 4
    s_add_u32 s33, s33, s82
    s_lshl_b32 s33, s33, 2
    s_add_u32 s33, s33, s24
    s_mul_i32 s33, s33, 9216
    s_add_u32 s33, s33, {WS_PART}
    s_cmp_eq_u32 s82, 3 && s_cselect_b32 s33, 0x7f000000, s33
    s_mul_i32 s34, s81, {16*9216}
    s_add_u32 s67, s33, s34
    ''' + ''.join(f'''
    s_xor_b32 s34, s81, {3 ^ ap}
    s_mul_i32 s34, s34, {16*9216}
    s_add_u32 s{64+ap}, s33, s34
    {f"s_add_u32 s33, s33, 3072" if ap < 2 else ""}
    ''' for ap in range(3)) + f'''
    v_mov_b32 v14, v214
    s_mov_b32 s29, 0
    s_mov_b32 s16, s76
    s_mov_b32 s17, s77
    s_mov_b32 s18, {H_BYTES}
    s_mov_b32 s19, 0x20000
    s_mul_i32 s33, s39, {4*144*1024}
    s_lshl_b32 s34, s38, 10
    s_add_u32 s34, s33, s34
    v_add_u32 v8, s34, v{VL16}
    s_mov_b32 s32, {fx(-GC0/LAM)}
    s_mov_b32 s74, s86
    s_mov_b32 s75, s87
    s_sub_u32 s84, s84, 2048 && s_subb_u32 s85, s85, 0
    s_mov_b32 s86, {D*F*2+2048}
    s_mov_b32 s87, 0x20000
    s_lshl_b32 s34, s82, 3
    s_add_u32 s33, s27, s34
    s_lshl_b32 s33, s33, 6
    s_add_u32 s33, s33, korder_tab-L_pc
    v_add_u32 v96, s33, v0
    global_load_ubyte v{VTAB}, v96, s[68:69]
    s_lshl_b32 s33, s24, 3
    v_add_u32 v236, s33, v10
    v_mul_u32_u24 v236, 1152, v236
    v_and_b32 v96, 6, v10
    v_xor_b32 v96, v96, v11
    v_lshl_add_u32 v236, v96, 4, v236
    s_mul_i32 s33, s82, 384
    s_mul_i32 s34, s81, {36*32*1152}
    s_add_u32 s33, s33, s34
    s_add_u32 s33, s33, 2048
    v_add_u32 v236, s33, v236
    v_add_u32 v237, {(128-1024) & 0xffffffff}, v236
    v_add_u32 v238, {(256-2048) & 0xffffffff}, v236
    s_lshl_b32 s33, s25, 3
    s_lshl_b32 s34, s24, 1
    s_add_u32 s83, s33, s34
    s_mul_i32 s33, s83, {144*1024}
    s_mul_i32 s34, s81, {36*1024}
    s_add_u32 s33, s33, s34
    v_add_u32 v239, s33, v{VL16}
    v_add_u32 v240, {144*1024}, v239
    s_xor_b32 s34, s81, 3
    v_lshrrev_b32 v96, 5, v0
    v_bfe_u32 v97, v0, 2, 3
    v_and_b32 v98, 3, v0
    v_mul_u32_u24 v241, 3072, v96
    v_lshl_add_u32 v241, v97, 7, v241
    v_lshl_add_u32 v241, v98, 3, v241
    v_lshrrev_b32 v97, 1, v97
    v_xor_b32 v97, s34, v97
    v_lshl_add_u32 v241, v97, 5, v241
    v_xor_b32 v242, 32, v241
    v_xor_b32 v243, 64, v241
    v_xor_b32 v244, 96, v241
    s_mul_i32 s63, s24, 3072
    v_min_u32 v96, 11, v0
    v_lshrrev_b32 v97, 2, v96
    v_and_b32 v96, 3, v96
    v_mul_u32_u24 v15, 1152, v96
    v_lshl_add_u32 v15, v97, 7, v15
    s_lshl_b32 s33, s27, 2
    s_add_u32 s33, s33, s24
    s_mul_i32 s33, s33, {36*1152}
    s_mul_i32 s34, s81, {1152*1152}
    s_add_u32 s33, s33, s34
    s_mul_i32 s34, s82, 384
    s_add_u32 s33, s33, s34
    s_add_u32 s72, s33, 2048
    s_cmp_eq_u32 s82, 3 && s_cselect_b32 s72, 0x7f000000, s72
    v_mov_b32 v{VTHR}, 0
    s_mov_b32 s33, 0x776654
    v_writelane_b32 v{VTHR}, s33, 0
    v_writelane_b32 v{VTHR}, s33, 1
    v_writelane_b32 v{VTHR}, s33, 2
    s_mov_b32 s33, 0x766440
    v_writelane_b32 v{VTHR}, s33, 3
    ''' + '\n'.join(f'v_add_u32 v{241+4*w+j}, {w << 16}, v{241+j}' for w in (1, 2) for j in range(4)), max(e, 11*16+2), dense=True)
    print('first block: set-up ends at gap', e)
    first = Asm(); g.emit(first)
    stamp(a, 3)
    for l in resolve_waits(first.lines, prev=pre.lines): a(l)
    g = g1_block('loop')
    g.vec(12*16+10, poll_ld('poll'), 3)
    if OPT.get('cpf2', 1): g.vec(13*16+10, 'global_load_dword v253, v14, s[68:69]', 3)
    if OPT.get('gpf', 1):
        for n, k in enumerate((4, 9, 16)): g.vec(k*16+3, f'buffer_load_dword v253, v15, s[84:87], s72 offen', 3); g.scalar(k*16+8, f's_add_u32 s72, s72, {4*1152}', strict=True)
    for ln, k in enumerate((2, 7, 14)): g.vec(k*16+3, f'buffer_store_dwordx4 {vr(FILL,4)}, v{VL16}, s[20:23], s64 offen offset:{ln*1024} sc1 ; tag=pfl{ln}', 3)
    for gi, t in zip((1, 2, 4, 8), ('s_mov_b32 s33, s64', 's_mov_b32 s64, s65', 's_mov_b32 s65, s66', 's_mov_b32 s66, s33')): g.scalar(15*16+gi, t, strict=True)
    for gi, t in [(8, 's_add_u32 s29, s29, 1'), (12, 's_cmp_eq_u32 s29, 3'), (13, 's_cselect_b32 s6, 256, 0'),
                  ((18-LA1f())*16+2, 's_cmp_eq_u32 s29, 5'), ((18-LA1f())*16+3, 's_cselect_b32 s10, 0, s10'), ((18-LA1f())*16+4, 's_cselect_b32 s14, 0, s14'), (285, 's_cmp_lt_u32 s29, s35')]:
        g.scalar(gi, t, strict=True)
    g1_geglu(g, 'loop')
    body = Asm(); g.emit(body)
    stamp(a, 22)
    a.label('L_g1_loop')
    if STAMP[0] and not OPT.get('noloopstamp'): a('s_memtime s[96:97]\ns_memrealtime s[98:99]\ns_add_u32 m0, s29, 4\ns_waitcnt lgkmcnt(0)\nv_writelane_b32 v254, s96, m0\nv_writelane_b32 v255, s98, m0')
    for l in resolve_waits(body.lines): a(l)
    a('s_cbranch_scc1 L_g1_loop')
    stamp(a, 19)
    a('s_cmp_eq_u32 s82, 3\ns_cbranch_scc1 L_prole')
    g_role(a, body.lines)
    a.label('L_prole')
    a('s_nop 7')
    tail_geglu(a, ALLP)
    a(f'{LVLUP}\ns_waitcnt vmcnt(0)\ns_barrier\n{SIGNAL}')
    stamp_out(a, 1, 76)
    a('s_endpgm')
    a.label('L_vrole')
    v_role(a)
    a.label('L_end')
    a('s_endpgm')

def add_page_stubs(lines, wrap):
    import subprocess
    open('_ps.s', 'w').write(wrap(lines))
    subprocess.run(['clang', '-x', 'assembler', '-target', 'amdgcn-amd-amdhsa', '-mcpu=gfx950', '-c', '_ps.s', '-o', '_ps.o'], check=True)
    d = subprocess.run(['llvm-objdump', '-d', '--mcpu=gfx950', '_ps.o'], capture_output=True, text=True).stdout.split('\n')
    i0 = next(i for i, l in enumerate(d) if '<L_main>:' in l)
    sizes = [4*len(l.split('//')[1].split(':')[1].split()) for l in d[i0:] if '//' in l and l.startswith('\t')]
    isi = lambda l: not (l.endswith(':') or l.startswith(('.', ';')))
    m = lines.index('L_main:'); out = lines[:m+1] + ['L_pg0:', '@stub']; pos = 4; n = 1; k = 0; done = False
    for i in range(m+1, len(lines)):
        l = lines[i]
        if l == 'L_vrole:': done = True
        if isi(l):
            if not done and pos >= 4096*n:
                prev = out[-1]; c = Ins(l)
                good = prev.startswith('v_mfma') and not c.salu and not c.vmem
                if good or pos + sizes[k] >= 4096*n + 40:
                    out += [f'L_pg{n}:', '@stub']; pos += 4; n += 1
            pos += sizes[k]; k += 1
        out.append(l)
    j = 0
    for i, l in enumerate(out):
        if l == '@stub': out[i] = f's_cbranch_execz {f"L_pg{j+4}" if j+4 < n else "L_back"}'; j += 1
    print('page stubs', n)
    return out

def main(argv):
    out = argv[0]
    STAMP[0] = '-s' in argv
    for x in argv:
        if '=' in x: OPT[x.split('=')[0]] = int(x.split('=')[1])
    if 'padat' in OPT: PAD.update(at=OPT['padat'], t=OPT['padt'])
    hdr = open(f'cdna_kernels/{NAME}.s.ref').read().split('; Override launch')[0]
    a = Asm(); fused_kernel(a)
    hid = [l.replace('s_branch L_pg', 's_nop 0 ; s_branch L_pg').replace('s_cbranch_scc1 L_pg', 's_nop 0 ; s_cbranch_scc1 L_pg') for l in a.lines]
    hid, n = fix_hazards(hid, '-v' in argv)
    a.lines = [l.replace('s_nop 0 ; ', '') for l in hid]
    print('instructions', len(a.lines), 'nops added', n)
    def wrap(lines):
        b = Asm(); b.lines = lines
        s = hdr + '; @launch grid=(256,1,1) block=(256,1,1) lds=163840\n.amdgcn_target "amdgcn-amd-amdhsa--gfx950"\n.text\n'
        s += f'.globl {NAME}_kernel\n.p2align 8\n.type {NAME}_kernel,@function\n' + b.text()
        t = korder_table()
        s += '.p2align 6\n.type korder_tab,@object\nkorder_tab:\n' + ''.join('.byte ' + ','.join(map(str, t[i:i+64])) + '\n' for i in range(0, len(t), 64)) + f'.size korder_tab, {len(t)}\ncode_end:\n'
        t = lane_table()
        s += '.p2align 7\n.type vlane_tab,@object\nvlane_tab:\n' + ''.join('.long ' + ','.join(map(hex, t[i:i+16])) + '\n' for i in range(0, len(t), 16)) + f'.size vlane_tab, {4*len(t)}\n'
        return s + '.section .rodata,"a"\n.p2align 6\n' + kd(NAME + '_kernel', 512, 256, 102)
    if OPT.get('stubs', 1):
        tmp = [re.sub(r'L_pg\d', 'L_main', l) for l in a.lines]
        st = add_page_stubs(tmp, wrap); m = a.lines.index('L_main:')
        a.lines = a.lines[:m] + st[m:]
    open(out, 'w').write(wrap(a.lines))

if __name__ == '__main__':
    main(sys.argv[1:])
```
